```python
import torch

def _softmax(x, axis=-1):
    return torch.softmax(x, dim=axis)
def _gelu(x):
    return torch.nn.functional.gelu(x, approximate="tanh")
def _silu(x):
    return torch.nn.functional.silu(x)
def _sigmoid(x):
    return torch.sigmoid(x)
def _layernorm(x, axis=-1, eps=1e-5):
    m = x.mean(dim=axis, keepdim=True)
    v = x.var(dim=axis, keepdim=True, unbiased=False)
    return (x - m) / torch.sqrt(v + eps)
def _scatter_add(tgt, idx, src, axis=0):
    return tgt.clone().index_add_(axis, idx, src)
def _segment_sum(src, seg, n):
    out = torch.zeros((n,) + src.shape[1:], dtype=src.dtype)
    return out.index_add_(0, seg, src)
def _pad(x, pw):
    flat = tuple(v for pair in reversed(pw) for v in pair)
    return torch.nn.functional.pad(x, flat)

kernel_name = 'parallel_sum__gqa_block_cached__swiglu_ffn__decode'

def setup_inputs():

    _w = (lambda a: (lambda t: t.to(torch.bfloat16) if t.is_floating_point() else t)(torch.as_tensor(a)))
    def _A_setup():
        B, Sq, D = 1, 1, 576
        Hq, Hkv, Sk, Dh = 32, 16, 8192, 128
        assert Hq % Hkv == 0, (Hq, Hkv)
        return {
            "x": _w((lambda *s: torch.randn(*s, dtype=torch.bfloat16) * 0.05)(B, Sq, D)),
            "k_cache": _w((lambda *s: torch.randn(*s, dtype=torch.bfloat16) * 3.2)(B, Hkv, Sk, Dh)),
            "v_cache": _w((lambda *s: torch.randn(*s, dtype=torch.bfloat16) * 1.6)(B, Hkv, Sk, Dh)),
            "wq": _w((lambda *s: torch.randn(*s, dtype=torch.bfloat16) * 3.2)(D, Hq * Dh) * (D ** -0.5)),
            "wo": _w((lambda *s: torch.randn(*s, dtype=torch.bfloat16) * 1.6)(Hq * Dh, D) * ((Hq * Dh) ** -0.5)),
        }
    _A_in = _A_setup()

    def _B_setup():
        B, S, D, F = 1, 1, 576, 4608
        return {
            "x": _w((lambda *s: torch.randn(*s, dtype=torch.bfloat16) * 0.05)(B, S, D)),
            "w_gate": _w((lambda *s: torch.randn(*s, dtype=torch.bfloat16) * 0.05)(D, F)),
            "w_up": _w((lambda *s: torch.randn(*s, dtype=torch.bfloat16) * 0.05)(D, F)),
            "w_down": _w((lambda *s: torch.randn(*s, dtype=torch.bfloat16) * 0.05)(F, D)),
        }
    _B_in = _B_setup()

    return {
        "A_x": _A_in["x"],
        "A_k_cache": _A_in["k_cache"],
        "A_v_cache": _A_in["v_cache"],
        "A_wq": _A_in["wq"],
        "A_wo": _A_in["wo"],
        "B_x": _B_in["x"],
        "B_w_gate": _B_in["w_gate"],
        "B_w_up": _B_in["w_up"],
        "B_w_down": _B_in["w_down"],
    }

def reference(A_x, A_k_cache, A_v_cache, A_wq, A_wo, B_x, B_w_gate, B_w_up, B_w_down):
    def _A_ref(x, k_cache, v_cache, wq, wo):
        B, Sq, D = x.shape
        Hq, Dh = 32, 128
        Hkv = k_cache.shape[1]
        rep = Hq // Hkv
        q = (lambda x, *d: x.permute(*d))((x @ wq).reshape(B, Sq, Hq, Dh), 0, 2, 1, 3)
        k = (lambda x, n, axis: torch.repeat_interleave(x, n, dim=axis))(k_cache, rep, axis=1)
        v = (lambda x, n, axis: torch.repeat_interleave(x, n, dim=axis))(v_cache, rep, axis=1)
        scores = torch.einsum("bhqd,bhkd->bhqk", q, k) * (Dh ** -0.5)
        p = _softmax(scores, axis=-1)
        o = torch.einsum("bhqk,bhkd->bhqd", p, v)
        return (lambda x, *d: x.permute(*d))(o, 0, 2, 1, 3).reshape(B, Sq, Hq * Dh) @ wo

    def _B_ref(x, w_gate, w_up, w_down):
        g = _silu(x @ w_gate)
        u = x @ w_up
        return (g * u) @ w_down

    x = A_x
    xn = _layernorm(x, axis=-1)
    return x + _A_ref(xn, A_k_cache, A_v_cache, A_wq, A_wo) + _B_ref(xn, B_w_gate, B_w_up, B_w_down)
```

```python
import sys

NAME = 'parallel_sum__gqa_block_cached__swiglu_ffn__decode'
HDR = open('cdna_kernels/%s.s.ref' % NAME).read().split('; Override launch')[0]

NT = ' nt'
SPIN = 400000

L_FL = 0
L_Q = 256
L_H = 768
L_OB = 1152
L_ML = 1408
L_OC = 2048
L_K = 8192
LDS_BYTES = L_K + 4 * 32768

P1_OFF = 0
P2_OFF = 1 << 20
P3_OFF = 2 << 20
P2_SLOT = 640
P3_SLOT = 576

sX, sK, sV, sWQ, sWO, sBX, sWG, sWU, sWD, sOUT, sDBG, sWS = [8 + 2 * i for i in range(12)]
sA, sB, sWAVE, sHH, sCB = 32, 33, 34, 35, 36
sSELLO, sSELHI, sMASKHI, sLOG2E, sSPIN, sONES = 37, 38, 39, 44, 45, 46
sT0, sT1, sT2, sT3 = 52, 53, 54, 55
sT4, sT5, sT6, sT7 = 56, 57, 58, 59


class Asm:
    def __init__(self):
        self.l = []
        self.n = 0

    def __call__(self, s):
        self.l.append('    ' + s)

    def label(self, s):
        self.l.append(s + ':')

    def c(self, s):
        self.l.append('    ; ' + s)

    def newlabel(self, p):
        self.n += 1
        return 'L_%s_%d' % (p, self.n)

    def nop(self, n):
        while n > 0:
            k = min(n, 16)
            self('s_nop %d' % (k - 1))
            n -= k


A = Asm()


def sp(r):
    return 's[%d:%d]' % (r, r + 1)


def vr(r, n=4):
    return 'v[%d:%d]' % (r, r + n - 1)


def allreduce(op, v, t):
    for d in ['quad_perm:[1,0,3,2]', 'quad_perm:[2,3,0,1]', 'row_half_mirror', 'row_mirror']:
        A.nop(2)
        A('v_%s_f32_dpp v%d, v%d, v%d %s row_mask:0xf bank_mask:0xf' % (op, v, v, v, d))
    xrow(op, v, t)


def xrow(op, v, t):
    for sw in ['v_permlane16_swap_b32', 'v_permlane32_swap_b32']:
        A('v_mov_b32 v%d, v%d' % (t, v))
        A.nop(2)
        A('%s v%d, v%d' % (sw, v, t))
        A('v_%s_f32 v%d, v%d, v%d' % (op, v, v, t))


def xhalf(op, v, t):
    A('v_mov_b32 v%d, v%d' % (t, v))
    A.nop(2)
    A('v_permlane32_swap_b32 v%d, v%d' % (v, t))
    A('v_%s_f32 v%d, v%d, v%d' % (op, v, v, t))


def rne(v):
    A('v_cvt_pk_bf16_f32 v%d, v%d, v%d' % (v, v, v))
    A('v_lshlrev_b32 v%d, 16, v%d' % (v, v))


def rne2(a, b, t):
    A('v_cvt_pk_bf16_f32 v%d, v%d, v%d' % (t, a, b))
    A('v_lshlrev_b32 v%d, 16, v%d' % (a, t))
    A('v_and_b32 v%d, s%d, v%d' % (b, sMASKHI, t))


def add64(s, imm):
    A('s_add_u32 s%d, s%d, %d' % (s, s, imm))
    A('s_addc_u32 s%d, s%d, 0' % (s + 1, s + 1))


def lds_wait_flag(off, vz, vt):
    lp = A.newlabel('lw')
    dn = A.newlabel('lwd')
    A('s_mov_b32 s%d, %d' % (sSPIN, SPIN * 8))
    A.label(lp)
    A('ds_read_b32 v%d, v%d offset:%d' % (vt, vz, off))
    A('s_waitcnt lgkmcnt(0)')
    A('v_readfirstlane_b32 s%d, v%d' % (sT0, vt))
    A('s_cmp_lg_u32 s%d, 0' % sT0)
    A('s_cbranch_scc1 %s' % dn)
    A('s_sleep 1')
    A('s_sub_u32 s%d, s%d, 1' % (sSPIN, sSPIN))
    A('s_cmp_lg_u32 s%d, 0' % sSPIN)
    A('s_cbranch_scc1 %s' % lp)
    A.label(dn)


def transpose8(src, dst):
    for j in range(8):
        for q in range(4):
            A('v_perm_b32 v%d, v%d, v%d, s%d' % (dst + 4 * j + q, src + 4 * (2 * q + 1) + (j >> 1),
                                                  src + 4 * (2 * q) + (j >> 1), sSELHI if j & 1 else sSELLO))


def gen():
    A.l.append(HDR.rstrip('\n'))
    A.l.append('; @launch grid=(256,1,1) block=(512,1,1) lds=%d' % LDS_BYTES)
    A.l.append('.amdgcn_target "amdgcn-amd-amdhsa--gfx950"')
    A.l.append('.text')
    A.l.append('.globl %s_kernel' % NAME)
    A.l.append('.p2align 8')
    A.l.append('.type %s_kernel,@function' % NAME)
    A.label('%s_kernel' % NAME)
    A('s_cmp_ge_u32 s2, 256')
    A('s_cbranch_scc1 L_end')
    A('s_load_dwordx16 s[8:23], s[0:1], 0')
    A('s_load_dwordx8 s[24:31], s[0:1], 64')
    vLane, vC, vG, vZ = 1, 3, 4, 7
    A('v_and_b32 v1, 63, v0')
    A('v_lshrrev_b32 v2, 6, v0')
    A('v_and_b32 v%d, 15, v1' % vC)
    A('v_lshrrev_b32 v%d, 4, v1' % vG)
    A('v_mov_b32 v%d, 0' % vZ)
    A('v_readfirstlane_b32 s%d, v2' % sWAVE)
    A('s_and_b32 s%d, s2, 7' % sA)
    A('s_lshl_b32 s%d, s%d, 1' % (sA, sA))
    A('s_bfe_u32 s3, s2, 0x10003')
    A('s_or_b32 s%d, s%d, s3' % (sA, sA))
    A('s_lshr_b32 s%d, s2, 4' % sB)
    A('s_lshr_b32 s%d, s%d, 3' % (sHH, sB))
    A('s_and_b32 s%d, s%d, 7' % (sCB, sB))
    A('s_mov_b32 s%d, 0x05040100' % sSELLO)
    A('s_mov_b32 s%d, 0x07060302' % sSELHI)
    A('s_mov_b32 s%d, 0xffff0000' % sMASKHI)
    A('s_mov_b32 s%d, 0x3fb8aa3b' % sLOG2E)
    A('s_mov_b32 s%d, 0x01010101' % sONES)
    A('s_cmp_ge_u32 s%d, 4' % sWAVE)
    A('s_cbranch_scc1 L_aux')

    A.c('---------------- KV waves')
    vKoff, vVoff, vT = 5, 6, 8
    vQ, vS, vKt, vAcc, vV = 16, 32, 64, 96, 128
    vP = 16
    A('s_cmp_lg_u32 s%d, 0' % sWAVE)
    A('s_cbranch_scc1 L_kv_noinit')
    A('v_mov_b32 v8, 0')
    A('v_mov_b32 v9, 0')
    A('v_mov_b32 v10, 0')
    A('v_mov_b32 v11, 0')
    A('v_lshlrev_b32 v12, 4, v%d' % vLane)
    A('ds_write_b128 v12, v[8:11]')
    A('ds_write_b128 v12, v[8:11] offset:1024')
    A('s_waitcnt lgkmcnt(0)')
    A.label('L_kv_noinit')
    A('v_lshlrev_b32 v%d, 8, v%d' % (vKoff, vC))
    A('v_lshl_add_u32 v%d, v%d, 4, v%d' % (vKoff, vG, vKoff))
    A('v_lshlrev_b32 v%d, 10, v%d' % (vVoff, vG))
    A('v_lshl_add_u32 v%d, v%d, 4, v%d' % (vVoff, vC, vVoff))
    A('s_lshl_b32 s%d, s%d, 21' % (sT4, sA))
    A('s_lshl_b32 s%d, s%d, 17' % (sT5, sB))
    A('s_add_u32 s%d, s%d, s%d' % (sT4, sT4, sT5))
    A('s_lshl_b32 s%d, s%d, 15' % (sT5, sWAVE))
    A('s_add_u32 s%d, s%d, s%d' % (sT4, sT4, sT5))
    A('s_add_u32 s%d, s%d, %d' % (sT6, sT5, L_K))
    A('s_waitcnt lgkmcnt(0)')
    A('s_barrier')
    A('s_add_u32 s40, s%d, s%d' % (sK, sT4))
    A('s_addc_u32 s41, s%d, 0' % (sK + 1))
    A('s_add_u32 s42, s%d, s%d' % (sV, sT4))
    A('s_addc_u32 s43, s%d, 0' % (sV + 1))
    for t in range(8):
        for j in range(4):
            A('s_add_u32 m0, s%d, %d' % (sT6, (4 * t + j) * 1024 - 64 * j))
            A('s_nop 0')
            A('global_load_lds_dwordx4 v%d, s[40:41] offset:%d%s' % (vKoff, 64 * j, NT))
        add64(40, 4096)
    for u in range(4):
        for hf in range(2):
            for i in range(4):
                A('global_load_dwordx4 %s, v%d, s[42:43] offset:%d%s' % (vr(vV + (u * 8 + hf * 4 + i) * 4), vVoff, i * 256, NT))
            add64(42, 4096)
    A.c('wait for q')
    lds_wait_flag(L_FL + 0, vZ, vT)
    A('v_and_b32 v%d, 1, v%d' % (vT, vLane))
    A('v_lshlrev_b32 v%d, 8, v%d' % (vT, vT))
    A('v_lshl_add_u32 v%d, v%d, 4, v%d' % (vT, vG, vT))
    for j in range(4):
        A('ds_read_b128 %s, v%d offset:%d' % (vr(vQ + 4 * j), vT, L_Q + 64 * j))
    A('v_lshlrev_b32 v%d, 4, v%d' % (vT + 1, vLane))
    A('v_add_u32 v%d, s%d, v%d' % (vT + 1, sT6, vT + 1))
    A('s_waitcnt vmcnt(32)')
    for bt in range(4):
        for tt in range(2):
            for j in range(4):
                A('ds_read_b128 %s, v%d offset:%d' % (vr(vKt + (tt * 4 + j) * 4), vT + 1, ((2 * bt + tt) * 4 + j) * 1024))
        A('s_waitcnt lgkmcnt(0)')
        for tt in range(2):
            t = 2 * bt + tt
            for j in range(4):
                A('v_mfma_f32_16x16x32_bf16 %s, %s, %s, %s' % (vr(vS + 4 * t), vr(vKt + (tt * 4 + j) * 4), vr(vQ + 4 * j),
                                                                '0' if j == 0 else vr(vS + 4 * t)))
    A.nop(10)
    A.c('round scores like the reference: bf16(bf16(raw) * scale)')
    A('s_mov_b32 s%d, 0x3db504f3' % sT0)
    for k in range(0, 32, 2):
        rne2(vS + k, vS + k + 1, vT)
        A('v_mul_f32 v%d, s%d, v%d' % (vS + k, sT0, vS + k))
        A('v_mul_f32 v%d, s%d, v%d' % (vS + k + 1, sT0, vS + k + 1))
        rne2(vS + k, vS + k + 1, vT)
    vM, vL = 10, 11
    A('v_max3_f32 v%d, v%d, v%d, v%d' % (vM, vS, vS + 1, vS + 2))
    for k in range(3, 31, 2):
        A('v_max3_f32 v%d, v%d, v%d, v%d' % (vM, vM, vS + k, vS + k + 1))
    A('v_max_f32 v%d, v%d, v%d' % (vM, vM, vS + 31))
    xrow('max', vM, vT)
    for k in range(32):
        A('v_sub_f32 v%d, v%d, v%d' % (vS + k, vS + k, vM))
        A('v_mul_f32 v%d, s%d, v%d' % (vS + k, sLOG2E, vS + k))
        A('v_exp_f32 v%d, v%d' % (vS + k, vS + k))
    A.nop(1)
    A('v_add_f32 v%d, v%d, v%d' % (vL, vS, vS + 1))
    for k in range(2, 32):
        A('v_add_f32 v%d, v%d, v%d' % (vL, vL, vS + k))
    xrow('add', vL, vT)
    for k in range(16):
        A('v_cvt_pk_bf16_f32 v%d, v%d, v%d' % (vP + k, vS + 2 * k, vS + 2 * k + 1))
    A.c('PV')
    for u in range(4):
        A('s_waitcnt vmcnt(%d)' % (24 - 8 * u))
        transpose8(vV + 32 * u, vKt)
        A.nop(2)
        for j in range(8):
            A('v_mfma_f32_16x16x32_bf16 %s, %s, %s, %s' % (vr(vAcc + 4 * j), vr(vP + 4 * u), vr(vKt + 4 * j),
                                                            '0' if u == 0 else vr(vAcc + 4 * j)))
    A.nop(10)
    A.c('write o partial of this wave to LDS')
    for hd in range(2):
        for j in range(8):
            A('v_mov_b32 v%d, v%d' % (vS + 8 * hd + j, vAcc + 4 * j + hd))
    A('s_lshl_b32 s%d, s%d, 10' % (sT0, sWAVE))
    A('v_lshlrev_b32 v%d, 5, v%d' % (vT, vC))
    A('v_add_u32 v%d, s%d, v%d' % (vT, sT0, vT))
    A('s_lshl_b32 s%d, s%d, 4' % (sT0, sWAVE))
    A('v_lshlrev_b32 v%d, 3, v%d' % (vT + 1, vLane))
    A('v_add_u32 v%d, s%d, v%d' % (vT + 1, sT0, vT + 1))
    A('s_mov_b64 exec, 0xffff')
    for hd in range(2):
        A('ds_write_b128 v%d, %s offset:%d' % (vT, vr(vS + 8 * hd), L_OC + 512 * hd))
        A('ds_write_b128 v%d, %s offset:%d' % (vT, vr(vS + 8 * hd + 4), L_OC + 512 * hd + 16))
    A('s_mov_b64 exec, 3')
    A('ds_write_b64 v%d, v[%d:%d] offset:%d' % (vT + 1, vM, vL, L_ML))
    A('s_mov_b64 exec, 1')
    A('v_mov_b32 v%d, 1' % vT)
    A('s_waitcnt lgkmcnt(0)')
    A('ds_add_rtn_u32 v%d, v%d, v%d offset:%d' % (vT, vZ, vT, L_FL + 12))
    A('s_waitcnt lgkmcnt(0)')
    A('v_readfirstlane_b32 s%d, v%d' % (sT0, vT))
    A('s_mov_b64 exec, -1')
    A('s_cmp_lg_u32 s%d, 3' % sT0)
    A('s_cbranch_scc1 L_end')
    A.c('last KV wave: combine the four partials and publish')
    vHd, vKk = 12, 13
    A('v_lshrrev_b32 v%d, 5, v%d' % (vHd, vLane))
    A('v_and_b32 v%d, 31, v%d' % (vKk, vLane))
    A('v_lshlrev_b32 v%d, 4, v%d' % (vT, vLane))
    A('v_lshlrev_b32 v%d, 3, v%d' % (vT + 1, vHd))
    for w in range(4):
        A('ds_read_b128 %s, v%d offset:%d' % (vr(vS + 4 * w), vT, L_OC + 1024 * w))
        A('ds_read_b64 v[%d:%d], v%d offset:%d' % (vS + 16 + 2 * w, vS + 17 + 2 * w, vT + 1, L_ML + 16 * w))
    A('s_waitcnt lgkmcnt(0)')
    m_ = [vS + 16 + 2 * w for w in range(4)]
    l_ = [vS + 17 + 2 * w for w in range(4)]
    A('v_max3_f32 v%d, v%d, v%d, v%d' % (vM, m_[0], m_[1], m_[2]))
    A('v_max_f32 v%d, v%d, v%d' % (vM, vM, m_[3]))
    for w in range(4):
        A('v_sub_f32 v%d, v%d, v%d' % (m_[w], m_[w], vM))
        A('v_mul_f32 v%d, s%d, v%d' % (m_[w], sLOG2E, m_[w]))
        A('v_exp_f32 v%d, v%d' % (m_[w], m_[w]))
    A.nop(1)
    A('v_mul_f32 v%d, v%d, v%d' % (vL, m_[0], l_[0]))
    for w in range(1, 4):
        A('v_fmac_f32 v%d, v%d, v%d' % (vL, m_[w], l_[w]))
    vO = vS + 24
    for e in range(4):
        A('v_mul_f32 v%d, v%d, v%d' % (vO + e, m_[0], vS + e))
        for w in range(1, 4):
            A('v_fmac_f32 v%d, v%d, v%d' % (vO + e, m_[w], vS + 4 * w + e))
    A('s_lshl_b32 s%d, s%d, 5' % (sT0, sA))
    A('s_add_u32 s%d, s%d, s%d' % (sT0, sT0, sB))
    A('s_mul_i32 s%d, s%d, %d' % (sT0, sT0, P2_SLOT))
    A('s_add_u32 s%d, s%d, %d' % (sT0, sT0, P2_OFF))
    A('s_add_u32 s40, s%d, s%d' % (sWS, sT0))
    A('s_addc_u32 s41, s%d, 0' % (sWS + 1))
    A('v_mul_u32_u24 v%d, %d, v%d' % (vT, 16 * P2_SLOT, vHd))
    A('v_lshl_add_u32 v%d, v%d, 4, v%d' % (vT + 1, vKk, vT))
    A('global_store_dwordx4 v%d, %s, s[40:41] sc1' % (vT + 1, vr(vO)))
    A('s_mov_b32 s%d, 1' % sT0)
    A('s_mov_b32 s%d, 1' % sT1)
    A('s_mov_b64 exec, s[%d:%d]' % (sT0, sT1))
    A('global_store_dwordx2 v%d, v[%d:%d], s[40:41] offset:512 sc1' % (vT, vM, vL))
    A('s_branch L_end')

    A.label('L_aux')
    A.c('---------------- aux waves: stage 1')
    sXW = 47
    A('s_sub_u32 s%d, s%d, 4' % (sXW, sWAVE))
    vHalf, vCi, vCh, vT = 5, 6, 19, 8
    vAdr, vStr = 14, 16
    vXs = 20
    vAc = 32
    vXr = 96
    vW = 128
    A('v_lshrrev_b32 v%d, 5, v%d' % (vHalf, vLane))
    A('v_and_b32 v%d, 31, v%d' % (vCi, vLane))
    A('v_min_u32 v%d, 25, v%d' % (vCh, vCi))
    A('s_mul_i32 s%d, s%d, 26' % (sT0, sXW))
    A('v_add_u32 v%d, s%d, v%d' % (vCh, sT0, vCh))
    A('s_mul_i32 s%d, s%d, 36' % (sT1, sB))
    A('v_add_u32 v%d, s%d, v%d' % (vT, sT1, vHalf))
    A('v_lshlrev_b32 v%d, 1, v%d' % (vT + 1, vLane))
    A('v_lshlrev_b32 v%d, 1, v%d' % (vT + 2, vT))
    A('s_waitcnt lgkmcnt(0)')
    for k in range(9):
        A('global_load_ushort v%d, v%d, %s offset:%d' % (vXs + k, vT + 1, sp(sX), 128 * k))
    for i in range(18):
        A('global_load_ushort v%d, v%d, %s offset:%d' % (vXr + i, vT + 2, sp(sX), 4 * i))
    A('s_lshl_b32 s%d, s%d, 9' % (sT0, sA))
    A('s_add_u32 s40, s%d, s%d' % (sWQ, sT0))
    A('s_addc_u32 s41, s%d, 0' % (sWQ + 1))
    A('s_mul_i32 s%d, s%d, 576' % (sT0, sA))
    A('s_add_u32 s42, s%d, s%d' % (sWG, sT0))
    A('s_addc_u32 s43, s%d, 0' % (sWG + 1))
    A('s_sub_u32 s42, s42, 512')
    A('s_subb_u32 s43, s43, 0')
    A('s_add_u32 s48, s%d, s%d' % (sWU, sT0))
    A('s_addc_u32 s49, s%d, 0' % (sWU + 1))
    A('s_sub_u32 s48, s48, 1088')
    A('s_subb_u32 s49, s49, 0')
    A('v_mov_b32 v%d, s40' % vAdr)
    A('v_mov_b32 v%d, s41' % (vAdr + 1))
    A('v_mov_b32 v%d, 0x2000' % vStr)
    A('v_mov_b32 v%d, s42' % (vT + 3))
    A('v_mov_b32 v%d, s43' % (vT + 4))
    A('v_mov_b32 v%d, 0x2400' % (vT + 5))
    A('v_cmp_lt_u32 vcc, 31, v%d' % vCh)
    A.nop(2)
    A('v_cndmask_b32 v%d, v%d, v%d, vcc' % (vAdr, vAdr, vT + 3))
    A('v_cndmask_b32 v%d, v%d, v%d, vcc' % (vAdr + 1, vAdr + 1, vT + 4))
    A('v_cndmask_b32 v%d, v%d, v%d, vcc' % (vStr, vStr, vT + 5))
    A('v_mov_b32 v%d, s48' % (vT + 3))
    A('v_mov_b32 v%d, s49' % (vT + 4))
    A('v_cmp_lt_u32 vcc, 67, v%d' % vCh)
    A.nop(2)
    A('v_cndmask_b32 v%d, v%d, v%d, vcc' % (vAdr, vAdr, vT + 3))
    A('v_cndmask_b32 v%d, v%d, v%d, vcc' % (vAdr + 1, vAdr + 1, vT + 4))
    A('v_mul_lo_u32 v%d, v%d, v%d' % (vT + 3, vT, vStr))
    A('v_lshl_add_u32 v%d, v%d, 4, v%d' % (vT + 3, vCh, vT + 3))
    A('v_add_co_u32 v%d, vcc, v%d, v%d' % (vAdr, vAdr, vT + 3))
    A('v_addc_co_u32 v%d, vcc, 0, v%d, vcc' % (vAdr + 1, vAdr + 1))
    A('v_lshlrev_b32 v%d, 1, v%d' % (vStr, vStr))
    for i in range(18):
        A('global_load_dwordx4 %s, v[%d:%d], off%s' % (vr(vW + 4 * i), vAdr, vAdr + 1, NT))
        if i < 17:
            A('v_add_co_u32 v%d, vcc, v%d, v%d' % (vAdr, vAdr, vStr))
            A('v_addc_co_u32 v%d, vcc, 0, v%d, vcc' % (vAdr + 1, vAdr + 1))
    A('s_barrier')
    A.c('layernorm statistics')
    A('s_waitcnt vmcnt(36)')
    vSum, vMean, vRs, vSd = 29, 30, 17, 18
    for k in range(9):
        A('v_lshlrev_b32 v%d, 16, v%d' % (vXs + k, vXs + k))
    A('v_add_f32 v%d, v%d, v%d' % (vSum, vXs, vXs + 1))
    for k in range(2, 9):
        A('v_add_f32 v%d, v%d, v%d' % (vSum, vSum, vXs + k))
    allreduce('add', vSum, vT)
    A('v_mul_f32 v%d, 0x3ae38e39, v%d' % (vMean, vSum))
    for k in range(9):
        A('v_sub_f32 v%d, v%d, v%d' % (vXs + k, vXs + k, vMean))
    A('v_mul_f32 v%d, v%d, v%d' % (vSum, vXs, vXs))
    for k in range(1, 9):
        A('v_fmac_f32 v%d, v%d, v%d' % (vSum, vXs + k, vXs + k))
    allreduce('add', vSum, vT)
    A('v_mul_f32 v%d, 0x3ae38e39, v%d' % (vSum, vSum))
    rne(vSum)
    A('v_add_f32 v%d, 0x3727c5ac, v%d' % (vSum, vSum))
    rne(vSum)
    A('v_sqrt_f32 v%d, v%d' % (vSd, vSum))
    A.nop(1)
    rne(vSd)
    A('v_rcp_f32 v%d, v%d' % (vRs, vSd))
    rne(vMean)
    A('s_waitcnt vmcnt(18)')
    for i in range(18):
        r = vXr + i
        A('v_lshlrev_b32 v%d, 16, v%d' % (r, r))
        A('v_sub_f32 v%d, v%d, v%d' % (r, r, vMean))
        rne(r)
        A('v_mul_f32 v%d, v%d, v%d' % (vT, r, vRs))
        A('v_fma_f32 v%d, -v%d, v%d, v%d' % (vT + 1, vT, vSd, r))
        A('v_fma_f32 v%d, v%d, v%d, v%d' % (r, vT + 1, vRs, vT))
        rne(r)
    for e in range(8):
        A('v_mov_b32 v%d, 0' % (vAc + e))
    for i in range(18):
        A('s_waitcnt vmcnt(%d)' % (17 - i))
        for r in range(4):
            A('v_lshlrev_b32 v%d, 16, v%d' % (vT, vW + 4 * i + r))
            A('v_and_b32 v%d, s%d, v%d' % (vT + 1, sMASKHI, vW + 4 * i + r))
            A('v_fmac_f32 v%d, v%d, v%d' % (vAc + 2 * r, vXr + i, vT))
            A('v_fmac_f32 v%d, v%d, v%d' % (vAc + 2 * r + 1, vXr + i, vT + 1))
    for e in range(8):
        xhalf('add', vAc + e, vT)
    A.c('publish stage-1 partials')
    A('s_lshl_b32 s%d, s%d, 4' % (sT0, sA))
    A('s_add_u32 s%d, s%d, s%d' % (sT0, sT0, sB))
    A('s_lshl_b32 s%d, s%d, 12' % (sT1, sT0))
    A('s_add_u32 s40, s%d, s%d' % (sWS, sT1))
    A('s_addc_u32 s41, s%d, 0' % (sWS + 1))
    A('v_lshlrev_b32 v%d, 5, v%d' % (vT, vCh))
    A('s_mov_b64 exec, 0x3ffffff')
    A('global_store_dwordx4 v%d, %s, s[40:41] sc1' % (vT, vr(vAc)))
    A('global_store_dwordx4 v%d, %s, s[40:41] offset:16 sc1' % (vT, vr(vAc + 4)))
    A('s_mov_b64 exec, -1')
    A('s_cmp_lg_u32 s%d, 0' % sXW)
    A('s_cbranch_scc1 L_noreset')
    A.c('x0: reset this workgroup\'s P2 / P3 slots to the sentinel')
    for e in range(4):
        A('v_mov_b32 v%d, -1' % (vXs + e))
    A('s_lshl_b32 s%d, s%d, 5' % (sT1, sA))
    A('s_add_u32 s%d, s%d, s%d' % (sT1, sT1, sB))
    A('s_mul_i32 s%d, s%d, %d' % (sT1, sT1, P2_SLOT))
    A('s_add_u32 s%d, s%d, %d' % (sT1, sT1, P2_OFF))
    A('s_add_u32 s40, s%d, s%d' % (sWS, sT1))
    A('s_addc_u32 s41, s%d, 0' % (sWS + 1))
    A('v_mul_u32_u24 v%d, %d, v%d' % (vT, 16 * P2_SLOT, vHalf))
    A('v_lshl_add_u32 v%d, v%d, 4, v%d' % (vT, vCi, vT))
    A('global_store_dwordx4 v%d, %s, s[40:41] sc1' % (vT, vr(vXs)))
    A('global_store_dwordx4 v%d, %s, s[40:41] offset:128 sc1' % (vT, vr(vXs)))
    A('s_lshl_b32 s%d, s%d, 5' % (sT1, sCB))
    A('s_lshl_b32 s%d, s%d, 1' % (sT2, sA))
    A('s_add_u32 s%d, s%d, s%d' % (sT1, sT1, sT2))
    A('s_add_u32 s%d, s%d, s%d' % (sT1, sT1, sHH))
    A('s_mul_i32 s%d, s%d, %d' % (sT1, sT1, P3_SLOT))
    A('s_add_u32 s%d, s%d, %d' % (sT1, sT1, P3_OFF))
    A('s_add_u32 s40, s%d, s%d' % (sWS, sT1))
    A('s_addc_u32 s41, s%d, 0' % (sWS + 1))
    A('v_lshlrev_b32 v%d, 4, v%d' % (vT, vLane))
    A('s_mov_b32 exec_hi, 15')
    A('global_store_dwordx4 v%d, %s, s[40:41] sc1' % (vT, vr(vXs)))
    A('s_mov_b64 exec, -1')
    A.label('L_noreset')
    A('s_waitcnt vmcnt(0)')
    A('s_mov_b64 exec, 1')
    A('v_mov_b32 v%d, 1' % vT)
    A('ds_add_rtn_u32 v%d, v%d, v%d offset:%d' % (vT + 1, vZ, vT, L_FL + 8))
    A('s_waitcnt lgkmcnt(0)')
    A('v_readfirstlane_b32 s%d, v%d' % (sT1, vT + 1))
    A('s_cmp_lg_u32 s%d, 3' % sT1)
    A('s_cbranch_scc1 L_noflag')
    A('v_mov_b32 v%d, s%d' % (vT + 1, sT0))
    A('global_store_byte v%d, v%d, %s sc1' % (vT + 1, vT, sp(sDBG)))
    A.label('L_noflag')
    A('s_mov_b64 exec, -1')
    A('s_cmp_eq_u32 s%d, 2' % sXW)
    A('s_cbranch_scc1 L_x2')
    A('s_cmp_eq_u32 s%d, 3' % sXW)
    A('s_cbranch_scc1 L_x3')

    A.c('x0/x1: wait for the 16 flags of this group')
    A('s_lshl_b32 s%d, s%d, 4' % (sT0, sA))
    A('v_mov_b32 v%d, s%d' % (vT, sT0))
    A('s_mov_b32 s%d, %d' % (sSPIN, SPIN))
    A.label('L_gpoll')
    A('global_load_dwordx4 %s, v%d, %s sc1' % (vr(vXs), vT, sp(sDBG)))
    A('s_waitcnt vmcnt(0)')
    A('v_and_b32 v%d, v%d, v%d' % (vXs, vXs, vXs + 1))
    A('v_and_b32 v%d, v%d, v%d' % (vXs + 2, vXs + 2, vXs + 3))
    A('v_and_b32 v%d, v%d, v%d' % (vXs, vXs, vXs + 2))
    A('v_cmp_ne_u32 vcc, s%d, v%d' % (sONES, vXs))
    A('s_cbranch_vccz L_gpoll_done')
    A('s_sleep 2')
    A('s_sub_u32 s%d, s%d, 1' % (sSPIN, sSPIN))
    A('s_cmp_lg_u32 s%d, 0' % sSPIN)
    A('s_cbranch_scc1 L_gpoll')
    A.label('L_gpoll_done')
    A('s_lshl_b32 s%d, s%d, 16' % (sT0, sA))
    A('s_add_u32 s40, s%d, s%d' % (sWS, sT0))
    A('s_addc_u32 s41, s%d, 0' % (sWS + 1))
    A('s_cmp_eq_u32 s%d, 1' % sXW)
    A('s_cbranch_scc1 L_x1')

    A.c('x0: gather q')
    A('v_lshlrev_b32 v%d, 4, v%d' % (vT, vLane))
    for bb in range(16):
        A('global_load_dwordx4 %s, v%d, s[40:41] sc1' % (vr(vW + 4 * bb), vT))
        if bb < 15:
            add64(40, 4096)
    for bb in range(1, 16):
        A('s_waitcnt vmcnt(%d)' % (15 - bb))
        for e in range(4):
            A('v_add_f32 v%d, v%d, v%d' % (vW + e, vW + e, vW + 4 * bb + e))
    A('v_cvt_pk_bf16_f32 v%d, v%d, v%d' % (vW, vW, vW + 1))
    A('v_cvt_pk_bf16_f32 v%d, v%d, v%d' % (vW + 1, vW + 2, vW + 3))
    A('v_lshlrev_b32 v%d, 3, v%d' % (vT, vLane))
    A('ds_write_b64 v%d, v[%d:%d] offset:%d' % (vT, vW, vW + 1, L_Q))
    A('v_mov_b32 v%d, 1' % (vT + 1))
    A('s_waitcnt lgkmcnt(0)')
    A('ds_write_b32 v%d, v%d offset:%d' % (vZ, vT + 1, L_FL + 0))
    A('s_cmp_lg_u32 s%d, 0' % sB)
    A('s_cbranch_scc1 L_end')
    A.c('x0 of workgroups with b==0: final reduction for 36 output columns')
    A('v_lshlrev_b32 v%d, 4, v%d' % (vT, vC))
    A('s_mov_b32 s%d, %d' % (sSPIN, SPIN))
    A.label('L_apoll')
    A('global_load_dwordx4 %s, v%d, %s sc1' % (vr(vXs), vT, sp(sDBG)))
    A('s_waitcnt vmcnt(0)')
    A('v_and_b32 v%d, v%d, v%d' % (vXs, vXs, vXs + 1))
    A('v_and_b32 v%d, v%d, v%d' % (vXs + 2, vXs + 2, vXs + 3))
    A('v_and_b32 v%d, v%d, v%d' % (vXs, vXs, vXs + 2))
    A('v_cmp_ne_u32 vcc, s%d, v%d' % (sONES, vXs))
    A('s_cbranch_vccz L_apoll_done')
    A('s_sleep 2')
    A('s_sub_u32 s%d, s%d, 1' % (sSPIN, sSPIN))
    A('s_cmp_lg_u32 s%d, 0' % sSPIN)
    A('s_cbranch_scc1 L_apoll')
    A.label('L_apoll_done')
    A('s_lshr_b32 s%d, s%d, 1' % (sT0, sA))
    A('s_and_b32 s%d, s%d, 1' % (sT1, sA))
    A('s_mul_i32 s%d, s%d, %d' % (sT2, sT0, 32 * P3_SLOT))
    A('s_mul_i32 s%d, s%d, 144' % (sT3, sT1))
    A('s_add_u32 s%d, s%d, s%d' % (sT2, sT2, sT3))
    A('s_add_u32 s%d, s%d, %d' % (sT2, sT2, P3_OFF))
    A('s_add_u32 s40, s%d, s%d' % (sWS, sT2))
    A('s_addc_u32 s41, s%d, 0' % (sWS + 1))
    vC8 = 9
    A('v_min_u32 v%d, 8, v%d' % (vC8, vC))
    vOf = 96
    A('v_mul_u32_u24 v%d, %d, v%d' % (vOf, P3_SLOT, vG))
    A('v_lshl_add_u32 v%d, v%d, 4, v%d' % (vOf, vC8, vOf))
    for i in range(1, 8):
        A('v_add_u32 v%d, %d, v%d' % (vOf + i, 4 * P3_SLOT * i, vOf))
    A('s_mul_i32 s%d, s%d, 72' % (sT4, sA))
    A('v_lshlrev_b32 v%d, 3, v%d' % (vOf + 8, vC8))
    A('v_add_u32 v%d, s%d, v%d' % (vOf + 8, sT4, vOf + 8))
    A('global_load_dwordx2 v[%d:%d], v%d, %s' % (vOf + 10, vOf + 11, vOf + 8, sp(sX)))
    A('s_mov_b32 s%d, %d' % (sSPIN, SPIN))
    A.label('L_fpoll')
    for i in range(8):
        A('global_load_dwordx4 %s, v%d, s[40:41] sc1' % (vr(vW + 8 * i), vOf + i))
        A('global_load_dwordx4 %s, v%d, s[40:41] offset:288 sc1' % (vr(vW + 8 * i + 4), vOf + i))
    A('s_waitcnt vmcnt(0)')
    A('v_max3_u32 v%d, v%d, v%d, v%d' % (vT, vW, vW + 1, vW + 2))
    for k in range(3, 63, 2):
        A('v_max3_u32 v%d, v%d, v%d, v%d' % (vT, vT, vW + k, vW + k + 1))
    A('v_max_u32 v%d, v%d, v%d' % (vT, vT, vW + 63))
    A('v_cmp_eq_u32 vcc, -1, v%d' % vT)
    A('s_cbranch_vccz L_fpoll_done')
    A('s_sub_u32 s%d, s%d, 1' % (sSPIN, sSPIN))
    A('s_cmp_lg_u32 s%d, 0' % sSPIN)
    A('s_cbranch_scc1 L_fpoll')
    A.label('L_fpoll_done')
    for i in range(1, 8):
        for e in range(8):
            A('v_add_f32 v%d, v%d, v%d' % (vW + e, vW + e, vW + 8 * i + e))
    for e in range(8):
        xrow('add', vW + e, vT)
    for e in range(0, 8, 2):
        rne2(vW + e, vW + e + 1, vT)
    A('v_lshlrev_b32 v%d, 16, v%d' % (vW + 8, vOf + 10))
    A('v_and_b32 v%d, s%d, v%d' % (vW + 9, sMASKHI, vOf + 10))
    A('v_lshlrev_b32 v%d, 16, v%d' % (vW + 10, vOf + 11))
    A('v_and_b32 v%d, s%d, v%d' % (vW + 11, sMASKHI, vOf + 11))
    for e in range(4):
        A('v_add_f32 v%d, v%d, v%d' % (vW + e, vW + e, vW + 8 + e))
    rne2(vW, vW + 1, vT)
    rne2(vW + 2, vW + 3, vT)
    for e in range(4):
        A('v_add_f32 v%d, v%d, v%d' % (vW + e, vW + e, vW + 4 + e))
    A('v_cvt_pk_bf16_f32 v%d, v%d, v%d' % (vW + 8, vW, vW + 1))
    A('v_cvt_pk_bf16_f32 v%d, v%d, v%d' % (vW + 9, vW + 2, vW + 3))
    A('s_mov_b64 exec, 0x1ff')
    A('global_store_dwordx2 v%d, v[%d:%d], %s' % (vOf + 8, vW + 8, vW + 9, sp(sOUT)))
    A('s_branch L_end')

    A.label('L_x1')
    A.c('x1: gather gate/up, compute h')
    A('v_min_u32 v%d, 35, v%d' % (vT, vLane))
    A('v_lshlrev_b32 v%d, 4, v%d' % (vT, vT))
    A('s_mul_i32 s%d, s%d, 576' % (sT0, sHH))
    A('s_add_u32 s%d, s%d, 1024' % (sT0, sT0))
    A('v_add_u32 v%d, s%d, v%d' % (vT, sT0, vT))
    for bb in range(16):
        A('global_load_dwordx4 %s, v%d, s[40:41] sc1' % (vr(vW + 8 * bb), vT))
        A('global_load_dwordx4 %s, v%d, s[40:41] offset:1152 sc1' % (vr(vW + 8 * bb + 4), vT))
        if bb < 15:
            add64(40, 4096)
    for bb in range(1, 16):
        A('s_waitcnt vmcnt(%d)' % (30 - 2 * bb))
        for e in range(8):
            A('v_add_f32 v%d, v%d, v%d' % (vW + e, vW + e, vW + 8 * bb + e))
    for e in range(0, 8, 2):
        rne2(vW + e, vW + e + 1, vT + 1)
    for e in range(4):
        g = vW + e
        A('v_mul_f32 v%d, s%d, v%d' % (vW + 8 + e, sLOG2E, g))
        A('v_exp_f32 v%d, -v%d' % (vW + 8 + e, vW + 8 + e))
        A.nop(1)
        A('v_add_f32 v%d, 1.0, v%d' % (vW + 8 + e, vW + 8 + e))
        A('v_rcp_f32 v%d, v%d' % (vW + 8 + e, vW + 8 + e))
        A.nop(1)
        A('v_mul_f32 v%d, v%d, v%d' % (g, g, vW + 8 + e))
    rne2(vW, vW + 1, vT + 1)
    rne2(vW + 2, vW + 3, vT + 1)
    for e in range(4):
        A('v_mul_f32 v%d, v%d, v%d' % (vW + e, vW + e, vW + 4 + e))
    A('v_cvt_pk_bf16_f32 v%d, v%d, v%d' % (vW + 8, vW, vW + 1))
    A('v_cvt_pk_bf16_f32 v%d, v%d, v%d' % (vW + 9, vW + 2, vW + 3))
    A('v_lshlrev_b32 v%d, 3, v%d' % (vT, vLane))
    A('s_mov_b32 exec_hi, 15')
    A('ds_write_b64 v%d, v[%d:%d] offset:%d' % (vT, vW + 8, vW + 9, L_H))
    A('v_mov_b32 v%d, 1' % (vT + 1))
    A('s_waitcnt lgkmcnt(0)')
    A('ds_write_b32 v%d, v%d offset:%d' % (vZ, vT + 1, L_FL + 4))
    A('s_branch L_end')

    def p3_slot():
        A('s_lshl_b32 s%d, s%d, 5' % (sT1, sCB))
        A('s_lshl_b32 s%d, s%d, 1' % (sT0, sA))
        A('s_add_u32 s%d, s%d, s%d' % (sT1, sT1, sT0))
        A('s_add_u32 s%d, s%d, s%d' % (sT1, sT1, sHH))
        A('s_mul_i32 s%d, s%d, %d' % (sT1, sT1, P3_SLOT))
        A('s_add_u32 s%d, s%d, %d' % (sT1, sT1, P3_OFF))
        A('s_add_u32 s48, s%d, s%d' % (sWS, sT1))
        A('s_addc_u32 s49, s%d, 0' % (sWS + 1))

    A.label('L_x2')
    A.c('x2: wo tile (128 rows x 72 cols)')
    vC8, vO1, vO2 = 9, 12, 13
    vR = 128
    vTB = 96
    vAcc = 32
    A('v_min_u32 v%d, 8, v%d' % (vC8, vC))
    A('v_mul_u32_u24 v%d, %d, v%d' % (vO1, 8 * 1152, vG))
    A('v_lshl_add_u32 v%d, v%d, 4, v%d' % (vO1, vC8, vO1))
    A('v_add_u32 v%d, %d, v%d' % (vO2, 4 * 1152, vO1))
    A('s_lshl_b32 s%d, s%d, 1' % (sT0, sA))
    A('s_add_u32 s%d, s%d, s%d' % (sT0, sT0, sHH))
    A('s_mul_i32 s%d, s%d, %d' % (sT1, sT0, 128 * 1152))
    A('s_mul_i32 s%d, s%d, 144' % (sT2, sCB))
    A('s_add_u32 s%d, s%d, s%d' % (sT1, sT1, sT2))
    A('s_add_u32 s40, s%d, s%d' % (sWO, sT1))
    A('s_addc_u32 s41, s%d, 0' % (sWO + 1))
    for blk in range(4):
        for i in range(8):
            A('global_load_dwordx4 %s, v%d, s[40:41] offset:%d%s' % (vr(vR + 32 * blk + 4 * i), vO1 if i < 4 else vO2, (i & 3) * 1152, NT))
        if blk < 3:
            add64(40, 32 * 1152)
    A('s_mul_i32 s%d, s%d, %d' % (sT1, sT0, 16 * P2_SLOT))
    A('s_add_u32 s%d, s%d, %d' % (sT1, sT1, P2_OFF))
    A('s_add_u32 s42, s%d, s%d' % (sWS, sT1))
    A('s_addc_u32 s43, s%d, 0' % (sWS + 1))
    p3_slot()
    vG1, vG2, vM1, vM2 = 14, 15, 16, 17
    A('v_mul_u32_u24 v%d, %d, v%d' % (vM1, P2_SLOT, vHalf))
    A('v_lshl_add_u32 v%d, v%d, 4, v%d' % (vG1, vCi, vM1))
    A('v_add_u32 v%d, %d, v%d' % (vG2, 4 * 2 * P2_SLOT, vG1))
    A('v_add_u32 v%d, 512, v%d' % (vM1, vM1))
    A('v_add_u32 v%d, %d, v%d' % (vM2, 4 * 2 * P2_SLOT, vM1))
    tb = [vTB, vR, vR + 32, vR + 64]
    for blk in range(4):
        A('s_waitcnt vmcnt(%d)' % (24 - 8 * blk))
        transpose8(vR + 32 * blk, tb[blk])
    A.c('group flags must be seen before the P2 slots are polled')
    A('s_lshl_b32 s%d, s%d, 4' % (sT0, sA))
    A('v_mov_b32 v%d, s%d' % (vT, sT0))
    A('s_mov_b32 s%d, %d' % (sSPIN, SPIN))
    A.label('L_g2poll')
    A('global_load_dwordx4 %s, v%d, %s sc1' % (vr(vXs), vT, sp(sDBG)))
    A('s_waitcnt vmcnt(0)')
    A('v_and_b32 v%d, v%d, v%d' % (vXs, vXs, vXs + 1))
    A('v_and_b32 v%d, v%d, v%d' % (vXs + 2, vXs + 2, vXs + 3))
    A('v_and_b32 v%d, v%d, v%d' % (vXs, vXs, vXs + 2))
    A('v_cmp_ne_u32 vcc, s%d, v%d' % (sONES, vXs))
    A('s_cbranch_vccz L_g2poll_done')
    A('s_sleep 2')
    A('s_sub_u32 s%d, s%d, 1' % (sSPIN, sSPIN))
    A('s_cmp_lg_u32 s%d, 0' % sSPIN)
    A('s_cbranch_scc1 L_g2poll')
    A.label('L_g2poll_done')
    vOo = 224
    vMl = 64
    A('s_mov_b32 s%d, %d' % (sSPIN, SPIN))
    A.label('L_opoll')
    for i in range(8):
        A('global_load_dwordx4 %s, v%d, s[42:43] offset:%d sc1' % (vr(vOo + 4 * i), vG1 if i < 4 else vG2, (i & 3) * 2 * P2_SLOT))
        A('global_load_dwordx2 v[%d:%d], v%d, s[42:43] offset:%d sc1' % (vMl + 2 * i, vMl + 2 * i + 1, vM1 if i < 4 else vM2, (i & 3) * 2 * P2_SLOT))
    A('s_waitcnt vmcnt(0)')
    A('v_max3_u32 v%d, v%d, v%d, v%d' % (vT, vOo, vOo + 1, vOo + 2))
    for k in range(3, 31, 2):
        A('v_max3_u32 v%d, v%d, v%d, v%d' % (vT, vT, vOo + k, vOo + k + 1))
    A('v_max_u32 v%d, v%d, v%d' % (vT, vT, vOo + 31))
    for k in range(0, 16, 2):
        A('v_max3_u32 v%d, v%d, v%d, v%d' % (vT, vT, vMl + k, vMl + k + 1))
    A('v_cmp_eq_u32 vcc, -1, v%d' % vT)
    A('s_cbranch_vccz L_opoll_done')
    A('s_sub_u32 s%d, s%d, 1' % (sSPIN, sSPIN))
    A('s_cmp_lg_u32 s%d, 0' % sSPIN)
    A('s_cbranch_scc1 L_opoll')
    A.label('L_opoll_done')
    vM, vL = 10, 11
    A('v_max3_f32 v%d, v%d, v%d, v%d' % (vM, vMl, vMl + 2, vMl + 4))
    A('v_max3_f32 v%d, v%d, v%d, v%d' % (vM, vM, vMl + 6, vMl + 8))
    A('v_max3_f32 v%d, v%d, v%d, v%d' % (vM, vM, vMl + 10, vMl + 12))
    A('v_max_f32 v%d, v%d, v%d' % (vM, vM, vMl + 14))
    xhalf('max', vM, vT)
    for i in range(8):
        A('v_sub_f32 v%d, v%d, v%d' % (vMl + 2 * i, vMl + 2 * i, vM))
        A('v_mul_f32 v%d, s%d, v%d' % (vMl + 2 * i, sLOG2E, vMl + 2 * i))
        A('v_exp_f32 v%d, v%d' % (vMl + 2 * i, vMl + 2 * i))
    A.nop(1)
    A('v_mul_f32 v%d, v%d, v%d' % (vL, vMl, vMl + 1))
    for i in range(1, 8):
        A('v_fmac_f32 v%d, v%d, v%d' % (vL, vMl + 2 * i, vMl + 2 * i + 1))
    vO = 80
    for e in range(4):
        A('v_mul_f32 v%d, v%d, v%d' % (vO + e, vMl, vOo + e))
        for i in range(1, 8):
            A('v_fmac_f32 v%d, v%d, v%d' % (vO + e, vMl + 2 * i, vOo + 4 * i + e))
    xhalf('add', vL, vT)
    for e in range(4):
        xhalf('add', vO + e, vT)
    A('v_rcp_f32 v%d, v%d' % (vL, vL))
    A.nop(1)
    for e in range(4):
        A('v_mul_f32 v%d, v%d, v%d' % (vO + e, vO + e, vL))
    A('v_cvt_pk_bf16_f32 v%d, v%d, v%d' % (vO, vO, vO + 1))
    A('v_cvt_pk_bf16_f32 v%d, v%d, v%d' % (vO + 1, vO + 2, vO + 3))
    A('v_lshlrev_b32 v%d, 3, v%d' % (vT, vCi))
    A('ds_write_b64 v%d, v[%d:%d] offset:%d' % (vT, vO, vO + 1, L_OB))
    A('v_lshlrev_b32 v%d, 4, v%d' % (vT, vG))
    A('s_waitcnt lgkmcnt(0)')
    vAo = 64
    for blk in range(4):
        A('ds_read_b128 %s, v%d offset:%d' % (vr(vAo + 4 * blk), vT, L_OB + 64 * blk))
    A('s_waitcnt lgkmcnt(0)')
    for blk in range(4):
        for j in range(8):
            A('v_mfma_f32_16x16x32_bf16 %s, %s, %s, %s' % (vr(vAcc + 4 * j), vr(vAo + 4 * blk), vr(tb[blk] + 4 * j),
                                                            '0' if blk == 0 else vr(vAcc + 4 * j)))
    A.nop(10)
    for j in range(8):
        A('v_mov_b32 v%d, v%d' % (vMl + j, vAcc + 4 * j))
    A('v_lshlrev_b32 v%d, 5, v%d' % (vT, vC))
    A('s_mov_b64 exec, 0x1ff')
    A('global_store_dwordx4 v%d, %s, s[48:49] sc1' % (vT, vr(vMl)))
    A('global_store_dwordx4 v%d, %s, s[48:49] offset:16 sc1' % (vT, vr(vMl + 4)))
    A('s_branch L_end')

    A.label('L_x3')
    A.c('x3: w_down tile (144 rows x 72 cols)')
    vR = 96
    vTB = 64
    vAcc = 32
    vO3, vO4 = 14, 15
    A('v_min_u32 v%d, 8, v%d' % (vC8, vC))
    A('v_mul_u32_u24 v%d, %d, v%d' % (vO1, 8 * 1152, vG))
    A('v_lshl_add_u32 v%d, v%d, 4, v%d' % (vO1, vC8, vO1))
    A('v_add_u32 v%d, %d, v%d' % (vO2, 4 * 1152, vO1))
    A('v_and_b32 v%d, 1, v%d' % (vO3, vG))
    A('v_mul_u32_u24 v%d, %d, v%d' % (vO3, 8 * 1152, vO3))
    A('v_lshl_add_u32 v%d, v%d, 4, v%d' % (vO3, vC8, vO3))
    A('v_add_u32 v%d, %d, v%d' % (vO4, 4 * 1152, vO3))
    A('s_lshl_b32 s%d, s%d, 1' % (sT0, sA))
    A('s_add_u32 s%d, s%d, s%d' % (sT0, sT0, sHH))
    A('s_mul_i32 s%d, s%d, %d' % (sT1, sT0, 144 * 1152))
    A('s_mul_i32 s%d, s%d, 144' % (sT2, sCB))
    A('s_add_u32 s%d, s%d, s%d' % (sT1, sT1, sT2))
    A('s_add_u32 s40, s%d, s%d' % (sWD, sT1))
    A('s_addc_u32 s41, s%d, 0' % (sWD + 1))
    for blk in range(5):
        o1, o2 = (vO1, vO2) if blk < 4 else (vO3, vO4)
        for i in range(8):
            A('global_load_dwordx4 %s, v%d, s[40:41] offset:%d%s' % (vr(vR + 32 * blk + 4 * i), o1 if i < 4 else o2, (i & 3) * 1152, NT))
        if blk < 4:
            add64(40, 32 * 1152)
    p3_slot()
    lds_wait_flag(L_FL + 4, vZ, vT)
    vAh = 16
    A('v_lshlrev_b32 v%d, 4, v%d' % (vT, vG))
    ah = [16, 20, 24, 28, 4 * 0 + 0]
    ah[4] = 0
    A('v_mov_b32 v%d, v%d' % (vO2, vC))
    vCc = vO2
    for blk in range(5):
        A('ds_read_b128 %s, v%d offset:%d' % (vr(ah[blk]), vT, L_H + 64 * blk))
    A('s_waitcnt lgkmcnt(0)')
    for blk in range(5):
        A('s_waitcnt vmcnt(%d)' % (32 - 8 * blk))
        transpose8(vR + 32 * blk, vTB)
        A.nop(2)
        for j in range(8):
            A('v_mfma_f32_16x16x32_bf16 %s, %s, %s, %s' % (vr(vAcc + 4 * j), vr(ah[blk]), vr(vTB + 4 * j),
                                                            '0' if blk == 0 else vr(vAcc + 4 * j)))
    A.nop(10)
    for j in range(8):
        A('v_mov_b32 v%d, v%d' % (vTB + j, vAcc + 4 * j))
    A('v_lshlrev_b32 v%d, 5, v%d' % (vT, vCc))
    A('s_mov_b64 exec, 0x1ff')
    A('global_store_dwordx4 v%d, %s, s[48:49] offset:288 sc1' % (vT, vr(vTB)))
    A('global_store_dwordx4 v%d, %s, s[48:49] offset:304 sc1' % (vT, vr(vTB + 4)))

    A.label('L_end')
    A('s_endpgm')
    A.l.append('.section .rodata,"a"')
    A.l.append('.p2align 6')
    A.l.append('.amdhsa_kernel %s_kernel' % NAME)
    A.l.append('  .amdhsa_next_free_vgpr 256')
    A.l.append('  .amdhsa_next_free_sgpr 64')
    A.l.append('  .amdhsa_accum_offset 256')
    A.l.append('  .amdhsa_group_segment_fixed_size 0')
    A.l.append('  .amdhsa_kernarg_size 96')
    A.l.append('  .amdhsa_user_sgpr_count 2')
    A.l.append('  .amdhsa_user_sgpr_kernarg_segment_ptr 1')
    A.l.append('  .amdhsa_system_sgpr_workgroup_id_x 1')
    A.l.append('.end_amdhsa_kernel')


gen()
out = sys.argv[1] if len(sys.argv) > 1 else 'cdna_kernels/%s.s' % NAME
open(out, 'w').write('\n'.join(A.l) + '\n')
print('wrote', out, len(A.l), 'lines')
```

```python
import sys

NAME = 'parallel_sum__gqa_block_cached__swiglu_ffn__decode'
HDR = open('cdna_kernels/%s.s.ref' % NAME).read().split('; Override launch')[0]

NT = ' nt'
SPIN = 400000
import os
KV_INFL = int(os.environ.get('KV_INFL', '8'))
W_INFL = int(os.environ.get('W_INFL', '4'))

L_FL = 0
L_Q = 256
L_H = 768
L_OB = 1152
L_ML = 1408
L_OC = 2048
L_K = 8192
LDS_BYTES = L_K + 4 * 32768

P1_OFF = 0
P2_OFF = 1 << 20
P3_OFF = 2 << 20
P2_SLOT = 640
P3_SLOT = 576
IB_OFF = 3 << 20

sX, sK, sV, sWQ, sWO, sBX, sWG, sWU, sWD, sOUT, sDBG, sWS = [8 + 2 * i for i in range(12)]
sA, sB, sWAVE, sHH, sCB = 32, 33, 34, 35, 36
sSELLO, sSELHI, sMASKHI, sLOG2E, sSPIN, sONES = 37, 38, 39, 44, 45, 46
sT0, sT1, sT2, sT3 = 52, 53, 54, 55
sT4, sT5, sT6, sT7 = 56, 57, 58, 59


STAMPS = bool(int(__import__('os').environ.get('STAMPS', '0')))
ST_OFF = 8 << 20

class Asm:
    def __init__(self):
        self.l = []
        self.n = 0

    def __call__(self, s):
        self.l.append('    ' + s)

    def label(self, s):
        self.l.append(s + ':')

    def c(self, s):
        self.l.append('    ; ' + s)

    def newlabel(self, p):
        self.n += 1
        return 'L_%s_%d' % (p, self.n)

    def nop(self, n):
        while n > 0:
            k = min(n, 16)
            self('s_nop %d' % (k - 1))
            n -= k


A = Asm()


def stamp(i):
    if not STAMPS:
        return
    A('s_memrealtime s[62:63]')
    A('s_waitcnt lgkmcnt(0)')
    A('s_mov_b32 s%d, s62' % (64 + i))


def sp(r):
    return 's[%d:%d]' % (r, r + 1)


def vr(r, n=4):
    return 'v[%d:%d]' % (r, r + n - 1)


def allreduce(op, v, t):
    for d in ['quad_perm:[1,0,3,2]', 'quad_perm:[2,3,0,1]', 'row_half_mirror', 'row_mirror']:
        A.nop(2)
        A('v_%s_f32_dpp v%d, v%d, v%d %s row_mask:0xf bank_mask:0xf' % (op, v, v, v, d))
    xrow(op, v, t)


def xrow(op, v, t):
    for sw in ['v_permlane16_swap_b32', 'v_permlane32_swap_b32']:
        A('v_mov_b32 v%d, v%d' % (t, v))
        A.nop(2)
        A('%s v%d, v%d' % (sw, v, t))
        A('v_%s_f32 v%d, v%d, v%d' % (op, v, v, t))


def xhalf(op, v, t):
    A('v_mov_b32 v%d, v%d' % (t, v))
    A.nop(2)
    A('v_permlane32_swap_b32 v%d, v%d' % (v, t))
    A('v_%s_f32 v%d, v%d, v%d' % (op, v, v, t))


def rne(v):
    A('v_cvt_pk_bf16_f32 v%d, v%d, v%d' % (v, v, v))
    A('v_lshlrev_b32 v%d, 16, v%d' % (v, v))


def rne2(a, b, t):
    A('v_cvt_pk_bf16_f32 v%d, v%d, v%d' % (t, a, b))
    A('v_lshlrev_b32 v%d, 16, v%d' % (a, t))
    A('v_and_b32 v%d, s%d, v%d' % (b, sMASKHI, t))


def add64(s, imm):
    A('s_add_u32 s%d, s%d, %d' % (s, s, imm))
    A('s_addc_u32 s%d, s%d, 0' % (s + 1, s + 1))


def lds_wait_flag(off, vz, vt):
    lp = A.newlabel('lw')
    dn = A.newlabel('lwd')
    A('s_mov_b32 s%d, %d' % (sSPIN, SPIN * 8))
    A.label(lp)
    A('ds_read_b32 v%d, v%d offset:%d' % (vt, vz, off))
    A('s_waitcnt lgkmcnt(0)')
    A('v_readfirstlane_b32 s%d, v%d' % (sT0, vt))
    A('s_cmp_lg_u32 s%d, 0' % sT0)
    A('s_cbranch_scc1 %s' % dn)
    A('s_sleep 1')
    A('s_sub_u32 s%d, s%d, 1' % (sSPIN, sSPIN))
    A('s_cmp_lg_u32 s%d, 0' % sSPIN)
    A('s_cbranch_scc1 %s' % lp)
    A.label(dn)


def transpose8(src, dst):
    for j in range(8):
        for q in range(4):
            A('v_perm_b32 v%d, v%d, v%d, s%d' % (dst + 4 * j + q, src + 4 * (2 * q + 1) + (j >> 1),
                                                  src + 4 * (2 * q) + (j >> 1), sSELHI if j & 1 else sSELLO))


def gen():
    A.l.append(HDR.rstrip('\n'))
    A.l.append('; @launch grid=(256,1,1) block=(512,1,1) lds=%d' % LDS_BYTES)
    A.l.append('.amdgcn_target "amdgcn-amd-amdhsa--gfx950"')
    A.l.append('.text')
    A.l.append('.globl %s_kernel' % NAME)
    A.l.append('.p2align 8')
    A.l.append('.type %s_kernel,@function' % NAME)
    A.label('%s_kernel' % NAME)
    A('s_cmp_ge_u32 s2, 256')
    A('s_cbranch_scc1 L_end')
    A('s_load_dwordx16 s[8:23], s[0:1], 0')
    A('s_load_dwordx8 s[24:31], s[0:1], 64')
    vLane, vC, vG, vZ = 1, 3, 4, 7
    if STAMPS:
        for i in range(16):
            A('s_mov_b32 s%d, 0' % (64 + i))
        stamp(0)
    A('v_and_b32 v1, 63, v0')
    A('v_lshrrev_b32 v2, 6, v0')
    A('v_and_b32 v%d, 15, v1' % vC)
    A('v_lshrrev_b32 v%d, 4, v1' % vG)
    A('v_mov_b32 v%d, 0' % vZ)
    A('v_readfirstlane_b32 s%d, v2' % sWAVE)
    A('s_and_b32 s%d, s2, 7' % sA)
    A('s_lshl_b32 s%d, s%d, 1' % (sA, sA))
    A('s_bfe_u32 s3, s2, 0x10003')
    A('s_or_b32 s%d, s%d, s3' % (sA, sA))
    A('s_lshr_b32 s%d, s2, 4' % sB)
    A('s_lshr_b32 s%d, s%d, 3' % (sHH, sB))
    A('s_and_b32 s%d, s%d, 7' % (sCB, sB))
    A('s_mov_b32 s%d, 0x05040100' % sSELLO)
    A('s_mov_b32 s%d, 0x07060302' % sSELHI)
    A('s_mov_b32 s%d, 0xffff0000' % sMASKHI)
    A('s_mov_b32 s%d, 0x3fb8aa3b' % sLOG2E)
    A('s_mov_b32 s%d, 0x01010101' % sONES)
    A('s_cmp_ge_u32 s%d, 4' % sWAVE)
    A('s_cbranch_scc1 L_aux')

    A.c('---------------- KV waves')
    vKoff, vVoff, vT = 5, 6, 8
    vQ, vS, vKt, vAcc, vV = 16, 32, 64, 96, 128
    vP = 16
    A('s_cmp_lg_u32 s%d, 0' % sWAVE)
    A('s_cbranch_scc1 L_kv_noinit')
    A('v_mov_b32 v8, 0')
    A('v_mov_b32 v9, 0')
    A('v_mov_b32 v10, 0')
    A('v_mov_b32 v11, 0')
    A('v_lshlrev_b32 v12, 4, v%d' % vLane)
    A('ds_write_b128 v12, v[8:11]')
    A('ds_write_b128 v12, v[8:11] offset:1024')
    A('s_waitcnt lgkmcnt(0)')
    A.label('L_kv_noinit')
    A('v_lshlrev_b32 v%d, 8, v%d' % (vKoff, vC))
    A('v_lshl_add_u32 v%d, v%d, 4, v%d' % (vKoff, vG, vKoff))
    A('v_lshlrev_b32 v%d, 10, v%d' % (vVoff, vG))
    A('v_lshl_add_u32 v%d, v%d, 4, v%d' % (vVoff, vC, vVoff))
    A('s_lshl_b32 s%d, s%d, 21' % (sT4, sA))
    A('s_lshl_b32 s%d, s%d, 17' % (sT5, sB))
    A('s_add_u32 s%d, s%d, s%d' % (sT4, sT4, sT5))
    A('s_lshl_b32 s%d, s%d, 15' % (sT5, sWAVE))
    A('s_add_u32 s%d, s%d, s%d' % (sT4, sT4, sT5))
    A('s_add_u32 s%d, s%d, %d' % (sT6, sT5, L_K))
    A('s_waitcnt lgkmcnt(0)')
    A('s_barrier')
    A('s_add_u32 s40, s%d, s%d' % (sK, sT4))
    A('s_addc_u32 s41, s%d, 0' % (sK + 1))
    A('s_add_u32 s42, s%d, s%d' % (sV, sT4))
    A('s_addc_u32 s43, s%d, 0' % (sV + 1))
    nld = 0
    for t in range(8):
        for j in range(4):
            A('s_add_u32 m0, s%d, %d' % (sT6, (4 * t + j) * 1024 - 64 * j))
            if nld >= KV_INFL:
                A('s_waitcnt vmcnt(%d)' % (KV_INFL - 1))
            else:
                A('s_nop 0')
            A('global_load_lds_dwordx4 v%d, s[40:41] offset:%d%s' % (vKoff, 64 * j, NT))
            nld += 1
        add64(40, 4096)
    for u in range(4):
        for hf in range(2):
            for i in range(4):
                if nld >= KV_INFL:
                    A('s_waitcnt vmcnt(%d)' % (KV_INFL - 1))
                A('global_load_dwordx4 %s, v%d, s[42:43] offset:%d%s' % (vr(vV + (u * 8 + hf * 4 + i) * 4), vVoff, i * 256, NT))
                nld += 1
            add64(42, 4096)
    stamp(1)
    A.c('wait for q')
    lds_wait_flag(L_FL + 0, vZ, vT)
    stamp(2)
    A('v_and_b32 v%d, 1, v%d' % (vT, vLane))
    A('v_lshlrev_b32 v%d, 8, v%d' % (vT, vT))
    A('v_lshl_add_u32 v%d, v%d, 4, v%d' % (vT, vG, vT))
    for j in range(4):
        A('ds_read_b128 %s, v%d offset:%d' % (vr(vQ + 4 * j), vT, L_Q + 64 * j))
    A('v_lshlrev_b32 v%d, 4, v%d' % (vT + 1, vLane))
    A('v_add_u32 v%d, s%d, v%d' % (vT + 1, sT6, vT + 1))
    A('s_waitcnt vmcnt(32)')
    stamp(3)
    for bt in range(4):
        for tt in range(2):
            for j in range(4):
                A('ds_read_b128 %s, v%d offset:%d' % (vr(vKt + (tt * 4 + j) * 4), vT + 1, ((2 * bt + tt) * 4 + j) * 1024))
        A('s_waitcnt lgkmcnt(0)')
        for tt in range(2):
            t = 2 * bt + tt
            for j in range(4):
                A('v_mfma_f32_16x16x32_bf16 %s, %s, %s, %s' % (vr(vS + 4 * t), vr(vKt + (tt * 4 + j) * 4), vr(vQ + 4 * j),
                                                                '0' if j == 0 else vr(vS + 4 * t)))
    A.nop(10)
    A.c('round scores like the reference: bf16(bf16(raw) * scale)')
    A('s_mov_b32 s%d, 0x3db504f3' % sT0)
    for k in range(0, 32, 2):
        rne2(vS + k, vS + k + 1, vT)
        A('v_mul_f32 v%d, s%d, v%d' % (vS + k, sT0, vS + k))
        A('v_mul_f32 v%d, s%d, v%d' % (vS + k + 1, sT0, vS + k + 1))
        rne2(vS + k, vS + k + 1, vT)
    vM, vL = 10, 11
    A('v_max3_f32 v%d, v%d, v%d, v%d' % (vM, vS, vS + 1, vS + 2))
    for k in range(3, 31, 2):
        A('v_max3_f32 v%d, v%d, v%d, v%d' % (vM, vM, vS + k, vS + k + 1))
    A('v_max_f32 v%d, v%d, v%d' % (vM, vM, vS + 31))
    xrow('max', vM, vT)
    for k in range(32):
        A('v_sub_f32 v%d, v%d, v%d' % (vS + k, vS + k, vM))
        A('v_mul_f32 v%d, s%d, v%d' % (vS + k, sLOG2E, vS + k))
        A('v_exp_f32 v%d, v%d' % (vS + k, vS + k))
    A.nop(1)
    A('v_add_f32 v%d, v%d, v%d' % (vL, vS, vS + 1))
    for k in range(2, 32):
        A('v_add_f32 v%d, v%d, v%d' % (vL, vL, vS + k))
    xrow('add', vL, vT)
    for k in range(16):
        A('v_cvt_pk_bf16_f32 v%d, v%d, v%d' % (vP + k, vS + 2 * k, vS + 2 * k + 1))
    stamp(4)
    A.c('PV')
    for u in range(4):
        A('s_waitcnt vmcnt(%d)' % (24 - 8 * u))
        transpose8(vV + 32 * u, vKt)
        A.nop(2)
        for j in range(8):
            A('v_mfma_f32_16x16x32_bf16 %s, %s, %s, %s' % (vr(vAcc + 4 * j), vr(vP + 4 * u), vr(vKt + 4 * j),
                                                            '0' if u == 0 else vr(vAcc + 4 * j)))
    A.nop(10)
    stamp(5)
    A.c('write o partial of this wave to LDS')
    for hd in range(2):
        for j in range(8):
            A('v_mov_b32 v%d, v%d' % (vS + 8 * hd + j, vAcc + 4 * j + hd))
    A('s_lshl_b32 s%d, s%d, 10' % (sT0, sWAVE))
    A('v_lshlrev_b32 v%d, 5, v%d' % (vT, vC))
    A('v_add_u32 v%d, s%d, v%d' % (vT, sT0, vT))
    A('s_lshl_b32 s%d, s%d, 4' % (sT0, sWAVE))
    A('v_lshlrev_b32 v%d, 3, v%d' % (vT + 1, vLane))
    A('v_add_u32 v%d, s%d, v%d' % (vT + 1, sT0, vT + 1))
    A('s_mov_b64 exec, 0xffff')
    for hd in range(2):
        A('ds_write_b128 v%d, %s offset:%d' % (vT, vr(vS + 8 * hd), L_OC + 512 * hd))
        A('ds_write_b128 v%d, %s offset:%d' % (vT, vr(vS + 8 * hd + 4), L_OC + 512 * hd + 16))
    A('s_mov_b64 exec, 3')
    A('ds_write_b64 v%d, v[%d:%d] offset:%d' % (vT + 1, vM, vL, L_ML))
    A('s_mov_b64 exec, 1')
    A('v_mov_b32 v%d, 1' % vT)
    A('s_waitcnt lgkmcnt(0)')
    A('ds_add_rtn_u32 v%d, v%d, v%d offset:%d' % (vT, vZ, vT, L_FL + 12))
    A('s_waitcnt lgkmcnt(0)')
    A('v_readfirstlane_b32 s%d, v%d' % (sT0, vT))
    A('s_mov_b64 exec, -1')
    A('s_cmp_lg_u32 s%d, 3' % sT0)
    A('s_cbranch_scc1 L_end')
    A.c('last KV wave: combine the four partials and publish')
    vHd, vKk = 12, 13
    A('v_lshrrev_b32 v%d, 5, v%d' % (vHd, vLane))
    A('v_and_b32 v%d, 31, v%d' % (vKk, vLane))
    A('v_lshlrev_b32 v%d, 4, v%d' % (vT, vLane))
    A('v_lshlrev_b32 v%d, 3, v%d' % (vT + 1, vHd))
    for w in range(4):
        A('ds_read_b128 %s, v%d offset:%d' % (vr(vS + 4 * w), vT, L_OC + 1024 * w))
        A('ds_read_b64 v[%d:%d], v%d offset:%d' % (vS + 16 + 2 * w, vS + 17 + 2 * w, vT + 1, L_ML + 16 * w))
    A('s_waitcnt lgkmcnt(0)')
    m_ = [vS + 16 + 2 * w for w in range(4)]
    l_ = [vS + 17 + 2 * w for w in range(4)]
    A('v_max3_f32 v%d, v%d, v%d, v%d' % (vM, m_[0], m_[1], m_[2]))
    A('v_max_f32 v%d, v%d, v%d' % (vM, vM, m_[3]))
    for w in range(4):
        A('v_sub_f32 v%d, v%d, v%d' % (m_[w], m_[w], vM))
        A('v_mul_f32 v%d, s%d, v%d' % (m_[w], sLOG2E, m_[w]))
        A('v_exp_f32 v%d, v%d' % (m_[w], m_[w]))
    A.nop(1)
    A('v_mul_f32 v%d, v%d, v%d' % (vL, m_[0], l_[0]))
    for w in range(1, 4):
        A('v_fmac_f32 v%d, v%d, v%d' % (vL, m_[w], l_[w]))
    vO = vS + 24
    for e in range(4):
        A('v_mul_f32 v%d, v%d, v%d' % (vO + e, m_[0], vS + e))
        for w in range(1, 4):
            A('v_fmac_f32 v%d, v%d, v%d' % (vO + e, m_[w], vS + 4 * w + e))
    A('s_lshl_b32 s%d, s%d, 5' % (sT0, sA))
    A('s_add_u32 s%d, s%d, s%d' % (sT0, sT0, sB))
    A('s_mul_i32 s%d, s%d, %d' % (sT0, sT0, P2_SLOT))
    A('s_add_u32 s%d, s%d, %d' % (sT0, sT0, P2_OFF))
    A('s_add_u32 s40, s%d, s%d' % (sWS, sT0))
    A('s_addc_u32 s41, s%d, 0' % (sWS + 1))
    A('v_mul_u32_u24 v%d, %d, v%d' % (vT, 16 * P2_SLOT, vHd))
    A('v_lshl_add_u32 v%d, v%d, 4, v%d' % (vT + 1, vKk, vT))
    A('global_store_dwordx4 v%d, %s, s[40:41] sc1' % (vT + 1, vr(vO)))
    A('s_mov_b32 s%d, 1' % sT0)
    A('s_mov_b32 s%d, 1' % sT1)
    A('s_mov_b64 exec, s[%d:%d]' % (sT0, sT1))
    A('global_store_dwordx2 v%d, v[%d:%d], s[40:41] offset:512 sc1' % (vT, vM, vL))
    A('s_branch L_end')

    A.label('L_aux')
    A.c('---------------- aux waves: stage 1')
    A('s_setprio 3')
    sXW = 47
    A('s_sub_u32 s%d, s%d, 4' % (sXW, sWAVE))
    vHalf, vCi, vCh, vT = 5, 6, 19, 8
    vAdr, vStr = 14, 16
    vXs = 20
    vAc = 32
    vXr = 96
    vW = 128
    A('v_lshrrev_b32 v%d, 5, v%d' % (vHalf, vLane))
    A('v_and_b32 v%d, 31, v%d' % (vCi, vLane))
    A('v_min_u32 v%d, 25, v%d' % (vCh, vCi))
    A('s_mul_i32 s%d, s%d, 26' % (sT0, sXW))
    A('v_add_u32 v%d, s%d, v%d' % (vCh, sT0, vCh))
    A('s_mul_i32 s%d, s%d, 36' % (sT1, sB))
    A('v_add_u32 v%d, s%d, v%d' % (vT, sT1, vHalf))
    A('v_lshlrev_b32 v%d, 1, v%d' % (vT + 1, vLane))
    A('v_lshlrev_b32 v%d, 1, v%d' % (vT + 2, vT))
    A('s_waitcnt lgkmcnt(0)')
    for k in range(9):
        A('global_load_ushort v%d, v%d, %s offset:%d' % (vXs + k, vT + 1, sp(sX), 128 * k))
    for i in range(18):
        A('global_load_ushort v%d, v%d, %s offset:%d' % (vXr + i, vT + 2, sp(sX), 4 * i))
    A('s_lshl_b32 s%d, s%d, 9' % (sT0, sA))
    A('s_add_u32 s40, s%d, s%d' % (sWQ, sT0))
    A('s_addc_u32 s41, s%d, 0' % (sWQ + 1))
    A('s_mul_i32 s%d, s%d, 576' % (sT0, sA))
    A('s_add_u32 s42, s%d, s%d' % (sWG, sT0))
    A('s_addc_u32 s43, s%d, 0' % (sWG + 1))
    A('s_sub_u32 s42, s42, 512')
    A('s_subb_u32 s43, s43, 0')
    A('s_add_u32 s48, s%d, s%d' % (sWU, sT0))
    A('s_addc_u32 s49, s%d, 0' % (sWU + 1))
    A('s_sub_u32 s48, s48, 1088')
    A('s_subb_u32 s49, s49, 0')
    A('v_mov_b32 v%d, s40' % vAdr)
    A('v_mov_b32 v%d, s41' % (vAdr + 1))
    A('v_mov_b32 v%d, 0x2000' % vStr)
    A('v_mov_b32 v%d, s42' % (vT + 3))
    A('v_mov_b32 v%d, s43' % (vT + 4))
    A('v_mov_b32 v%d, 0x2400' % (vT + 5))
    A('v_cmp_lt_u32 vcc, 31, v%d' % vCh)
    A.nop(2)
    A('v_cndmask_b32 v%d, v%d, v%d, vcc' % (vAdr, vAdr, vT + 3))
    A('v_cndmask_b32 v%d, v%d, v%d, vcc' % (vAdr + 1, vAdr + 1, vT + 4))
    A('v_cndmask_b32 v%d, v%d, v%d, vcc' % (vStr, vStr, vT + 5))
    A('v_mov_b32 v%d, s48' % (vT + 3))
    A('v_mov_b32 v%d, s49' % (vT + 4))
    A('v_cmp_lt_u32 vcc, 67, v%d' % vCh)
    A.nop(2)
    A('v_cndmask_b32 v%d, v%d, v%d, vcc' % (vAdr, vAdr, vT + 3))
    A('v_cndmask_b32 v%d, v%d, v%d, vcc' % (vAdr + 1, vAdr + 1, vT + 4))
    A('v_mul_lo_u32 v%d, v%d, v%d' % (vT + 3, vT, vStr))
    A('v_lshl_add_u32 v%d, v%d, 4, v%d' % (vT + 3, vCh, vT + 3))
    A('v_add_co_u32 v%d, vcc, v%d, v%d' % (vAdr, vAdr, vT + 3))
    A('v_addc_co_u32 v%d, vcc, 0, v%d, vcc' % (vAdr + 1, vAdr + 1))
    A('v_lshlrev_b32 v%d, 1, v%d' % (vStr, vStr))
    for i in range(18):
        A('global_load_dwordx4 %s, v[%d:%d], off%s' % (vr(vW + 4 * i), vAdr, vAdr + 1, NT))
        if i < 17:
            A('v_add_co_u32 v%d, vcc, v%d, v%d' % (vAdr, vAdr, vStr))
            A('v_addc_co_u32 v%d, vcc, 0, v%d, vcc' % (vAdr + 1, vAdr + 1))
    A('s_barrier')
    stamp(1)
    A.c('layernorm statistics')
    A('s_waitcnt vmcnt(36)')
    vSum, vMean, vRs, vSd = 29, 30, 17, 18
    for k in range(9):
        A('v_lshlrev_b32 v%d, 16, v%d' % (vXs + k, vXs + k))
    A('v_add_f32 v%d, v%d, v%d' % (vSum, vXs, vXs + 1))
    for k in range(2, 9):
        A('v_add_f32 v%d, v%d, v%d' % (vSum, vSum, vXs + k))
    allreduce('add', vSum, vT)
    A('v_mul_f32 v%d, 0x3ae38e39, v%d' % (vMean, vSum))
    for k in range(9):
        A('v_sub_f32 v%d, v%d, v%d' % (vXs + k, vXs + k, vMean))
    A('v_mul_f32 v%d, v%d, v%d' % (vSum, vXs, vXs))
    for k in range(1, 9):
        A('v_fmac_f32 v%d, v%d, v%d' % (vSum, vXs + k, vXs + k))
    allreduce('add', vSum, vT)
    A('v_mul_f32 v%d, 0x3ae38e39, v%d' % (vSum, vSum))
    rne(vSum)
    A('v_add_f32 v%d, 0x3727c5ac, v%d' % (vSum, vSum))
    rne(vSum)
    A('v_sqrt_f32 v%d, v%d' % (vSd, vSum))
    A.nop(1)
    rne(vSd)
    A('v_rcp_f32 v%d, v%d' % (vRs, vSd))
    rne(vMean)
    A('s_waitcnt vmcnt(18)')
    for i in range(18):
        r = vXr + i
        A('v_lshlrev_b32 v%d, 16, v%d' % (r, r))
        A('v_sub_f32 v%d, v%d, v%d' % (r, r, vMean))
        rne(r)
        A('v_mul_f32 v%d, v%d, v%d' % (vT, r, vRs))
        A('v_fma_f32 v%d, -v%d, v%d, v%d' % (vT + 1, vT, vSd, r))
        A('v_fma_f32 v%d, v%d, v%d, v%d' % (r, vT + 1, vRs, vT))
        rne(r)
    for e in range(8):
        A('v_mov_b32 v%d, 0' % (vAc + e))
    for i in range(18):
        A('s_waitcnt vmcnt(%d)' % (17 - i))
        for r in range(4):
            A('v_lshlrev_b32 v%d, 16, v%d' % (vT, vW + 4 * i + r))
            A('v_and_b32 v%d, s%d, v%d' % (vT + 1, sMASKHI, vW + 4 * i + r))
            A('v_fmac_f32 v%d, v%d, v%d' % (vAc + 2 * r, vXr + i, vT))
            A('v_fmac_f32 v%d, v%d, v%d' % (vAc + 2 * r + 1, vXr + i, vT + 1))
    for e in range(8):
        xhalf('add', vAc + e, vT)
    stamp(2)
    A.c('publish stage-1 partials')
    A('s_lshl_b32 s%d, s%d, 4' % (sT0, sA))
    A('s_add_u32 s%d, s%d, s%d' % (sT0, sT0, sB))
    A('s_lshl_b32 s%d, s%d, 12' % (sT1, sT0))
    A('s_add_u32 s40, s%d, s%d' % (sWS, sT1))
    A('s_addc_u32 s41, s%d, 0' % (sWS + 1))
    A('v_lshlrev_b32 v%d, 5, v%d' % (vT, vCh))
    A('s_mov_b64 exec, 0x3ffffff')
    A('global_store_dwordx4 v%d, %s, s[40:41] sc1' % (vT, vr(vAc)))
    A('global_store_dwordx4 v%d, %s, s[40:41] offset:16 sc1' % (vT, vr(vAc + 4)))
    A('s_mov_b64 exec, -1')
    A('s_cmp_lg_u32 s%d, 0' % sXW)
    A('s_cbranch_scc1 L_noreset')
    A.c('x0: reset this workgroup\'s P2 / P3 slots to the sentinel')
    for e in range(4):
        A('v_mov_b32 v%d, -1' % (vXs + e))
    A('s_lshl_b32 s%d, s%d, 5' % (sT1, sA))
    A('s_add_u32 s%d, s%d, s%d' % (sT1, sT1, sB))
    A('s_mul_i32 s%d, s%d, %d' % (sT1, sT1, P2_SLOT))
    A('s_add_u32 s%d, s%d, %d' % (sT1, sT1, P2_OFF))
    A('s_add_u32 s40, s%d, s%d' % (sWS, sT1))
    A('s_addc_u32 s41, s%d, 0' % (sWS + 1))
    A('v_mul_u32_u24 v%d, %d, v%d' % (vT, 16 * P2_SLOT, vHalf))
    A('v_lshl_add_u32 v%d, v%d, 4, v%d' % (vT, vCi, vT))
    A('global_store_dwordx4 v%d, %s, s[40:41] sc1' % (vT, vr(vXs)))
    A('global_store_dwordx4 v%d, %s, s[40:41] offset:128 sc1' % (vT, vr(vXs)))
    A('s_lshl_b32 s%d, s%d, 5' % (sT1, sCB))
    A('s_lshl_b32 s%d, s%d, 1' % (sT2, sA))
    A('s_add_u32 s%d, s%d, s%d' % (sT1, sT1, sT2))
    A('s_add_u32 s%d, s%d, s%d' % (sT1, sT1, sHH))
    A('s_mul_i32 s%d, s%d, %d' % (sT1, sT1, P3_SLOT))
    A('s_add_u32 s%d, s%d, %d' % (sT1, sT1, P3_OFF))
    A('s_add_u32 s40, s%d, s%d' % (sWS, sT1))
    A('s_addc_u32 s41, s%d, 0' % (sWS + 1))
    A('v_lshlrev_b32 v%d, 4, v%d' % (vT, vLane))
    A('s_mov_b32 exec_hi, 15')
    A('global_store_dwordx4 v%d, %s, s[40:41] sc1' % (vT, vr(vXs)))
    A('s_mov_b64 exec, -1')
    A('s_lshl_b32 s%d, s%d, 10' % (sT1, sT0))
    A('s_add_u32 s%d, s%d, %d' % (sT1, sT1, IB_OFF))
    A('s_add_u32 s40, s%d, s%d' % (sWS, sT1))
    A('s_addc_u32 s41, s%d, 0' % (sWS + 1))
    A('global_store_dwordx4 v%d, %s, s[40:41] sc1' % (vT, vr(vXs)))
    A.label('L_noreset')
    A('s_waitcnt vmcnt(0)')
    A('s_mov_b64 exec, 1')
    A('v_mov_b32 v%d, 1' % vT)
    A('ds_add_rtn_u32 v%d, v%d, v%d offset:%d' % (vT + 1, vZ, vT, L_FL + 8))
    A('s_waitcnt lgkmcnt(0)')
    A('v_readfirstlane_b32 s%d, v%d' % (sT1, vT + 1))
    A('s_cmp_lg_u32 s%d, 3' % sT1)
    A('s_cbranch_scc1 L_noflag')
    A('s_lshl_b32 s%d, s%d, 2' % (sT1, sA))
    A('v_mov_b32 v%d, s%d' % (vT + 1, sT1))
    A('global_atomic_add v%d, v%d, v%d, %s sc0 sc1' % (vT + 2, vT + 1, vT, sp(sDBG)))
    A('s_waitcnt vmcnt(0)')
    A('v_readfirstlane_b32 s%d, v%d' % (sT1, vT + 2))
    A('v_mov_b32 v%d, 2' % (vT + 2))
    A('s_cmp_lg_u32 s%d, 15' % sT1)
    A('s_cbranch_scc1 L_notlast')
    A('v_mov_b32 v%d, 64' % (vT + 1))
    A('global_atomic_add v%d, v%d, %s sc1' % (vT + 1, vT, sp(sDBG)))
    A('v_mov_b32 v%d, 1' % (vT + 2))
    A.label('L_notlast')
    A('ds_write_b32 v%d, v%d offset:%d' % (vZ, vT + 2, L_FL + 16))
    A.label('L_noflag')
    stamp(3)
    A('s_mov_b64 exec, -1')
    A('s_cmp_eq_u32 s%d, 2' % sXW)
    A('s_cbranch_scc1 L_x2')
    A('s_cmp_eq_u32 s%d, 3' % sXW)
    A('s_cbranch_scc1 L_x3')

    lds_wait_flag(L_FL + 16, vZ, vT)
    stamp(4)
    A('s_mov_b32 s%d, s%d' % (sT7, sT0))
    A('s_lshl_b32 s%d, s%d, 16' % (sT0, sA))
    A('s_add_u32 s40, s%d, s%d' % (sWS, sT0))
    A('s_addc_u32 s41, s%d, 0' % (sWS + 1))
    A('s_lshl_b32 s%d, s%d, 14' % (sT0, sA))
    A('s_add_u32 s%d, s%d, %d' % (sT0, sT0, IB_OFF))
    A('s_add_u32 s42, s%d, s%d' % (sWS, sT0))
    A('s_addc_u32 s43, s%d, 0' % (sWS + 1))
    A('s_lshl_b32 s%d, s%d, 10' % (sT0, sB))
    A('s_add_u32 s48, s42, s%d' % sT0)
    A('s_addc_u32 s49, s43, 0')
    A('s_cmp_eq_u32 s%d, 1' % sXW)
    A('s_cbranch_scc1 L_x1')

    A('s_cmp_lg_u32 s%d, 1' % sT7)
    A('s_cbranch_scc1 L_x0_wait')
    A.c('x0 (reducer): gather q, write the 16 inboxes')
    A('v_lshlrev_b32 v%d, 4, v%d' % (vT, vLane))
    for bb in range(16):
        A('global_load_dwordx4 %s, v%d, s[40:41] sc1' % (vr(vW + 4 * bb), vT))
        if bb < 15:
            add64(40, 4096)
    for bb in range(1, 16):
        A('s_waitcnt vmcnt(%d)' % (15 - bb))
        for e in range(4):
            A('v_add_f32 v%d, v%d, v%d' % (vW + e, vW + e, vW + 4 * bb + e))
    A('v_cvt_pk_bf16_f32 v%d, v%d, v%d' % (vW, vW, vW + 1))
    A('v_cvt_pk_bf16_f32 v%d, v%d, v%d' % (vW + 1, vW + 2, vW + 3))
    A('v_lshlrev_b32 v%d, 3, v%d' % (vT, vLane))
    for bb in range(16):
        A('global_store_dwordx2 v%d, v[%d:%d], s[42:43] offset:%d sc1' % (vT, vW, vW + 1, (bb & 3) * 1024))
        if bb & 3 == 3 and bb < 15:
            add64(42, 4096)
    A.label('L_x0_wait')
    A('v_lshlrev_b32 v%d, 3, v%d' % (vT, vLane))
    A('s_mov_b32 s%d, %d' % (sSPIN, SPIN))
    A.label('L_qpoll')
    A('global_load_dwordx2 v[%d:%d], v%d, s[48:49] sc1' % (vW + 4, vW + 5, vT))
    A('s_waitcnt vmcnt(0)')
    A('v_max_u32 v%d, v%d, v%d' % (vT + 1, vW + 4, vW + 5))
    A('v_cmp_eq_u32 vcc, -1, v%d' % (vT + 1))
    A('s_cbranch_vccz L_qpoll_done')
    A('s_sleep 4')
    A('s_sub_u32 s%d, s%d, 1' % (sSPIN, sSPIN))
    A('s_cmp_lg_u32 s%d, 0' % sSPIN)
    A('s_cbranch_scc1 L_qpoll')
    A.label('L_qpoll_done')
    A('ds_write_b64 v%d, v[%d:%d] offset:%d' % (vT, vW + 4, vW + 5, L_Q))
    A('v_mov_b32 v%d, 1' % (vT + 1))
    A('s_waitcnt lgkmcnt(0)')
    A('ds_write_b32 v%d, v%d offset:%d' % (vZ, vT + 1, L_FL + 0))
    stamp(5)
    A('s_cmp_lg_u32 s%d, 0' % sB)
    A('s_cbranch_scc1 L_end')
    A.c('x0 of workgroups with b==0: final reduction for 36 output columns')
    A('s_mov_b32 s%d, %d' % (sSPIN, SPIN))
    A.label('L_apoll')
    A('global_load_dword v%d, v%d, %s offset:64 sc1' % (vXs, vZ, sp(sDBG)))
    A('s_waitcnt vmcnt(0)')
    A('v_cmp_ne_u32 vcc, 16, v%d' % vXs)
    A('s_cbranch_vccz L_apoll_done')
    A('s_sleep 8')
    A('s_sub_u32 s%d, s%d, 1' % (sSPIN, sSPIN))
    A('s_cmp_lg_u32 s%d, 0' % sSPIN)
    A('s_cbranch_scc1 L_apoll')
    A.label('L_apoll_done')
    stamp(6)
    A('s_lshr_b32 s%d, s%d, 1' % (sT0, sA))
    A('s_and_b32 s%d, s%d, 1' % (sT1, sA))
    A('s_mul_i32 s%d, s%d, %d' % (sT2, sT0, 32 * P3_SLOT))
    A('s_mul_i32 s%d, s%d, 144' % (sT3, sT1))
    A('s_add_u32 s%d, s%d, s%d' % (sT2, sT2, sT3))
    A('s_add_u32 s%d, s%d, %d' % (sT2, sT2, P3_OFF))
    A('s_add_u32 s40, s%d, s%d' % (sWS, sT2))
    A('s_addc_u32 s41, s%d, 0' % (sWS + 1))
    vC8 = 9
    A('v_min_u32 v%d, 8, v%d' % (vC8, vC))
    vOf = 96
    A('v_mul_u32_u24 v%d, %d, v%d' % (vOf, P3_SLOT, vG))
    A('v_lshl_add_u32 v%d, v%d, 4, v%d' % (vOf, vC8, vOf))
    for i in range(1, 8):
        A('v_add_u32 v%d, %d, v%d' % (vOf + i, 4 * P3_SLOT * i, vOf))
    A('s_mul_i32 s%d, s%d, 72' % (sT4, sA))
    A('v_lshlrev_b32 v%d, 3, v%d' % (vOf + 8, vC8))
    A('v_add_u32 v%d, s%d, v%d' % (vOf + 8, sT4, vOf + 8))
    A('global_load_dwordx2 v[%d:%d], v%d, %s' % (vOf + 10, vOf + 11, vOf + 8, sp(sX)))
    A('s_mov_b32 s%d, %d' % (sSPIN, SPIN))
    A.label('L_fpoll')
    for i in range(8):
        A('global_load_dwordx4 %s, v%d, s[40:41] sc1' % (vr(vW + 8 * i), vOf + i))
        A('global_load_dwordx4 %s, v%d, s[40:41] offset:288 sc1' % (vr(vW + 8 * i + 4), vOf + i))
    A('s_waitcnt vmcnt(0)')
    A('v_max3_u32 v%d, v%d, v%d, v%d' % (vT, vW, vW + 1, vW + 2))
    for k in range(3, 63, 2):
        A('v_max3_u32 v%d, v%d, v%d, v%d' % (vT, vT, vW + k, vW + k + 1))
    A('v_max_u32 v%d, v%d, v%d' % (vT, vT, vW + 63))
    A('v_cmp_eq_u32 vcc, -1, v%d' % vT)
    A('s_cbranch_vccz L_fpoll_done')
    A('s_sub_u32 s%d, s%d, 1' % (sSPIN, sSPIN))
    A('s_cmp_lg_u32 s%d, 0' % sSPIN)
    A('s_cbranch_scc1 L_fpoll')
    A.label('L_fpoll_done')
    stamp(7)
    for i in range(1, 8):
        for e in range(8):
            A('v_add_f32 v%d, v%d, v%d' % (vW + e, vW + e, vW + 8 * i + e))
    for e in range(8):
        xrow('add', vW + e, vT)
    for e in range(0, 8, 2):
        rne2(vW + e, vW + e + 1, vT)
    A('v_lshlrev_b32 v%d, 16, v%d' % (vW + 8, vOf + 10))
    A('v_and_b32 v%d, s%d, v%d' % (vW + 9, sMASKHI, vOf + 10))
    A('v_lshlrev_b32 v%d, 16, v%d' % (vW + 10, vOf + 11))
    A('v_and_b32 v%d, s%d, v%d' % (vW + 11, sMASKHI, vOf + 11))
    for e in range(4):
        A('v_add_f32 v%d, v%d, v%d' % (vW + e, vW + e, vW + 8 + e))
    rne2(vW, vW + 1, vT)
    rne2(vW + 2, vW + 3, vT)
    for e in range(4):
        A('v_add_f32 v%d, v%d, v%d' % (vW + e, vW + e, vW + 4 + e))
    A('v_cvt_pk_bf16_f32 v%d, v%d, v%d' % (vW + 8, vW, vW + 1))
    A('v_cvt_pk_bf16_f32 v%d, v%d, v%d' % (vW + 9, vW + 2, vW + 3))
    A('s_mov_b64 exec, 0x1ff')
    A('global_store_dwordx2 v%d, v[%d:%d], %s' % (vOf + 8, vW + 8, vW + 9, sp(sOUT)))
    A('s_branch L_end')

    A.label('L_x1')
    A('s_cmp_lg_u32 s%d, 1' % sT7)
    A('s_cbranch_scc1 L_x1_wait')
    A.c('x1 (reducer): gather gate/up, compute h, write the inboxes')
    A('v_min_u32 v%d, 35, v%d' % (vT + 2, vLane))
    A('v_lshlrev_b32 v%d, 3, v%d' % (vT + 3, vT + 2))
    A('v_lshlrev_b32 v%d, 4, v%d' % (vT + 2, vT + 2))
    for hh in range(2):
        A('v_add_u32 v%d, %d, v%d' % (vT, 1024 + 576 * hh, vT + 2))
        A('s_mov_b32 s50, s40')
        A('s_mov_b32 s51, s41')
        for bb in range(16):
            A('global_load_dwordx4 %s, v%d, s[50:51] sc1' % (vr(vW + 8 * bb), vT))
            A('global_load_dwordx4 %s, v%d, s[50:51] offset:1152 sc1' % (vr(vW + 8 * bb + 4), vT))
            if bb < 15:
                add64(50, 4096)
        for bb in range(1, 16):
            A('s_waitcnt vmcnt(%d)' % (30 - 2 * bb))
            for e in range(8):
                A('v_add_f32 v%d, v%d, v%d' % (vW + e, vW + e, vW + 8 * bb + e))
        for e in range(0, 8, 2):
            rne2(vW + e, vW + e + 1, vT + 1)
        for e in range(4):
            g = vW + e
            A('v_mul_f32 v%d, s%d, v%d' % (vW + 8 + e, sLOG2E, g))
            A('v_exp_f32 v%d, -v%d' % (vW + 8 + e, vW + 8 + e))
            A.nop(1)
            A('v_add_f32 v%d, 1.0, v%d' % (vW + 8 + e, vW + 8 + e))
            A('v_rcp_f32 v%d, v%d' % (vW + 8 + e, vW + 8 + e))
            A.nop(1)
            A('v_mul_f32 v%d, v%d, v%d' % (g, g, vW + 8 + e))
        rne2(vW, vW + 1, vT + 1)
        rne2(vW + 2, vW + 3, vT + 1)
        for e in range(4):
            A('v_mul_f32 v%d, v%d, v%d' % (vW + e, vW + e, vW + 4 + e))
        A('v_cvt_pk_bf16_f32 v%d, v%d, v%d' % (vAc + 2 * hh, vW, vW + 1))
        A('v_cvt_pk_bf16_f32 v%d, v%d, v%d' % (vAc + 2 * hh + 1, vW + 2, vW + 3))
        A('s_mov_b32 exec_hi, 15')
        for bb in range(8):
            A('global_store_dwordx2 v%d, v[%d:%d], s[42:43] offset:%d sc1' % (vT + 3, vAc + 2 * hh, vAc + 2 * hh + 1, 512 + (bb & 3) * 1024))
            if bb & 3 == 3:
                add64(42, 4096)
        A('s_mov_b64 exec, -1')
    A.label('L_x1_wait')
    A('v_min_u32 v%d, 35, v%d' % (vT, vLane))
    A('v_lshlrev_b32 v%d, 3, v%d' % (vT, vT))
    A('s_mov_b32 s%d, %d' % (sSPIN, SPIN))
    A.label('L_hpoll')
    A('global_load_dwordx2 v[%d:%d], v%d, s[48:49] offset:512 sc1' % (vW + 4, vW + 5, vT))
    A('s_waitcnt vmcnt(0)')
    A('v_max_u32 v%d, v%d, v%d' % (vT + 1, vW + 4, vW + 5))
    A('v_cmp_eq_u32 vcc, -1, v%d' % (vT + 1))
    A('s_cbranch_vccz L_hpoll_done')
    A('s_sleep 8')
    A('s_sub_u32 s%d, s%d, 1' % (sSPIN, sSPIN))
    A('s_cmp_lg_u32 s%d, 0' % sSPIN)
    A('s_cbranch_scc1 L_hpoll')
    A.label('L_hpoll_done')
    A('ds_write_b64 v%d, v[%d:%d] offset:%d' % (vT, vW + 4, vW + 5, L_H))
    A('v_mov_b32 v%d, 1' % (vT + 1))
    A('s_waitcnt lgkmcnt(0)')
    A('ds_write_b32 v%d, v%d offset:%d' % (vZ, vT + 1, L_FL + 4))
    A('s_branch L_end')

    def p3_slot():
        A('s_lshl_b32 s%d, s%d, 5' % (sT1, sCB))
        A('s_lshl_b32 s%d, s%d, 1' % (sT0, sA))
        A('s_add_u32 s%d, s%d, s%d' % (sT1, sT1, sT0))
        A('s_add_u32 s%d, s%d, s%d' % (sT1, sT1, sHH))
        A('s_mul_i32 s%d, s%d, %d' % (sT1, sT1, P3_SLOT))
        A('s_add_u32 s%d, s%d, %d' % (sT1, sT1, P3_OFF))
        A('s_add_u32 s48, s%d, s%d' % (sWS, sT1))
        A('s_addc_u32 s49, s%d, 0' % (sWS + 1))

    A.label('L_x2')
    A.c('x2: wo tile (128 rows x 72 cols)')
    A('s_setprio 0')
    vC8, vO1, vO2 = 9, 12, 13
    vR = 128
    vTB = 96
    vAcc = 32
    A('v_min_u32 v%d, 8, v%d' % (vC8, vC))
    A('v_mul_u32_u24 v%d, %d, v%d' % (vO1, 8 * 1152, vG))
    A('v_lshl_add_u32 v%d, v%d, 4, v%d' % (vO1, vC8, vO1))
    A('v_add_u32 v%d, %d, v%d' % (vO2, 4 * 1152, vO1))
    A('s_lshl_b32 s%d, s%d, 1' % (sT0, sA))
    A('s_add_u32 s%d, s%d, s%d' % (sT0, sT0, sHH))
    A('s_mul_i32 s%d, s%d, %d' % (sT1, sT0, 128 * 1152))
    A('s_mul_i32 s%d, s%d, 144' % (sT2, sCB))
    A('s_add_u32 s%d, s%d, s%d' % (sT1, sT1, sT2))
    A('s_add_u32 s40, s%d, s%d' % (sWO, sT1))
    A('s_addc_u32 s41, s%d, 0' % (sWO + 1))
    for blk in range(4):
        for i in range(8):
            if blk * 8 + i >= W_INFL:
                A('s_waitcnt vmcnt(%d)' % (W_INFL - 1))
            A('global_load_dwordx4 %s, v%d, s[40:41] offset:%d%s' % (vr(vR + 32 * blk + 4 * i), vO1 if i < 4 else vO2, (i & 3) * 1152, NT))
        if blk < 3:
            add64(40, 32 * 1152)
    A('s_mul_i32 s%d, s%d, %d' % (sT1, sT0, 16 * P2_SLOT))
    A('s_add_u32 s%d, s%d, %d' % (sT1, sT1, P2_OFF))
    A('s_add_u32 s42, s%d, s%d' % (sWS, sT1))
    A('s_addc_u32 s43, s%d, 0' % (sWS + 1))
    p3_slot()
    vG1, vG2, vM1, vM2 = 14, 15, 16, 17
    A('v_mul_u32_u24 v%d, %d, v%d' % (vM1, P2_SLOT, vHalf))
    A('v_lshl_add_u32 v%d, v%d, 4, v%d' % (vG1, vCi, vM1))
    A('v_add_u32 v%d, %d, v%d' % (vG2, 4 * 2 * P2_SLOT, vG1))
    A('v_add_u32 v%d, 512, v%d' % (vM1, vM1))
    A('v_add_u32 v%d, %d, v%d' % (vM2, 4 * 2 * P2_SLOT, vM1))
    tb = [vTB, vR, vR + 32, vR + 64]
    for blk in range(4):
        A('s_waitcnt vmcnt(%d)' % (24 - 8 * blk))
        transpose8(vR + 32 * blk, tb[blk])
    stamp(4)
    A.c('q received <=> all 16 workgroups of the group have reset their P2 slots')
    A('s_setprio 3')
    lds_wait_flag(L_FL + 0, vZ, vT)
    vOo = 224
    vMl = 64
    A('s_mov_b32 s%d, %d' % (sSPIN, SPIN))
    A.label('L_opoll')
    for i in range(8):
        A('global_load_dwordx4 %s, v%d, s[42:43] offset:%d sc1' % (vr(vOo + 4 * i), vG1 if i < 4 else vG2, (i & 3) * 2 * P2_SLOT))
        A('global_load_dwordx2 v[%d:%d], v%d, s[42:43] offset:%d sc1' % (vMl + 2 * i, vMl + 2 * i + 1, vM1 if i < 4 else vM2, (i & 3) * 2 * P2_SLOT))
    A('s_waitcnt vmcnt(0)')
    A('v_max3_u32 v%d, v%d, v%d, v%d' % (vT, vOo, vOo + 1, vOo + 2))
    for k in range(3, 31, 2):
        A('v_max3_u32 v%d, v%d, v%d, v%d' % (vT, vT, vOo + k, vOo + k + 1))
    A('v_max_u32 v%d, v%d, v%d' % (vT, vT, vOo + 31))
    for k in range(0, 16, 2):
        A('v_max3_u32 v%d, v%d, v%d, v%d' % (vT, vT, vMl + k, vMl + k + 1))
    A('v_cmp_eq_u32 vcc, -1, v%d' % vT)
    A('s_cbranch_vccz L_opoll_done')
    A('s_sub_u32 s%d, s%d, 1' % (sSPIN, sSPIN))
    A('s_cmp_lg_u32 s%d, 0' % sSPIN)
    A('s_cbranch_scc1 L_opoll')
    A.label('L_opoll_done')
    stamp(5)
    vM, vL = 10, 11
    A('v_max3_f32 v%d, v%d, v%d, v%d' % (vM, vMl, vMl + 2, vMl + 4))
    A('v_max3_f32 v%d, v%d, v%d, v%d' % (vM, vM, vMl + 6, vMl + 8))
    A('v_max3_f32 v%d, v%d, v%d, v%d' % (vM, vM, vMl + 10, vMl + 12))
    A('v_max_f32 v%d, v%d, v%d' % (vM, vM, vMl + 14))
    xhalf('max', vM, vT)
    for i in range(8):
        A('v_sub_f32 v%d, v%d, v%d' % (vMl + 2 * i, vMl + 2 * i, vM))
        A('v_mul_f32 v%d, s%d, v%d' % (vMl + 2 * i, sLOG2E, vMl + 2 * i))
        A('v_exp_f32 v%d, v%d' % (vMl + 2 * i, vMl + 2 * i))
    A.nop(1)
    A('v_mul_f32 v%d, v%d, v%d' % (vL, vMl, vMl + 1))
    for i in range(1, 8):
        A('v_fmac_f32 v%d, v%d, v%d' % (vL, vMl + 2 * i, vMl + 2 * i + 1))
    vO = 80
    for e in range(4):
        A('v_mul_f32 v%d, v%d, v%d' % (vO + e, vMl, vOo + e))
        for i in range(1, 8):
            A('v_fmac_f32 v%d, v%d, v%d' % (vO + e, vMl + 2 * i, vOo + 4 * i + e))
    xhalf('add', vL, vT)
    for e in range(4):
        xhalf('add', vO + e, vT)
    A('v_rcp_f32 v%d, v%d' % (vL, vL))
    A.nop(1)
    for e in range(4):
        A('v_mul_f32 v%d, v%d, v%d' % (vO + e, vO + e, vL))
    A('v_cvt_pk_bf16_f32 v%d, v%d, v%d' % (vO, vO, vO + 1))
    A('v_cvt_pk_bf16_f32 v%d, v%d, v%d' % (vO + 1, vO + 2, vO + 3))
    A('v_lshlrev_b32 v%d, 3, v%d' % (vT, vCi))
    A('ds_write_b64 v%d, v[%d:%d] offset:%d' % (vT, vO, vO + 1, L_OB))
    A('v_lshlrev_b32 v%d, 4, v%d' % (vT, vG))
    A('s_waitcnt lgkmcnt(0)')
    vAo = 64
    for blk in range(4):
        A('ds_read_b128 %s, v%d offset:%d' % (vr(vAo + 4 * blk), vT, L_OB + 64 * blk))
    A('s_waitcnt lgkmcnt(0)')
    for blk in range(4):
        for j in range(8):
            A('v_mfma_f32_16x16x32_bf16 %s, %s, %s, %s' % (vr(vAcc + 4 * j), vr(vAo + 4 * blk), vr(tb[blk] + 4 * j),
                                                            '0' if blk == 0 else vr(vAcc + 4 * j)))
    A.nop(10)
    for j in range(8):
        A('v_mov_b32 v%d, v%d' % (vMl + j, vAcc + 4 * j))
    A('v_lshlrev_b32 v%d, 5, v%d' % (vT, vC))
    A('s_mov_b64 exec, 0x1ff')
    A('global_store_dwordx4 v%d, %s, s[48:49] sc1' % (vT, vr(vMl)))
    A('global_store_dwordx4 v%d, %s, s[48:49] offset:16 sc1' % (vT, vr(vMl + 4)))
    A('s_branch L_end')

    A.label('L_x3')
    A.c('x3: w_down tile (144 rows x 72 cols)')
    A('s_setprio 0')
    vR = 96
    vTB = 64
    vAcc = 32
    vO3, vO4 = 14, 15
    A('v_min_u32 v%d, 8, v%d' % (vC8, vC))
    A('v_mul_u32_u24 v%d, %d, v%d' % (vO1, 8 * 1152, vG))
    A('v_lshl_add_u32 v%d, v%d, 4, v%d' % (vO1, vC8, vO1))
    A('v_add_u32 v%d, %d, v%d' % (vO2, 4 * 1152, vO1))
    A('v_and_b32 v%d, 1, v%d' % (vO3, vG))
    A('v_mul_u32_u24 v%d, %d, v%d' % (vO3, 8 * 1152, vO3))
    A('v_lshl_add_u32 v%d, v%d, 4, v%d' % (vO3, vC8, vO3))
    A('v_add_u32 v%d, %d, v%d' % (vO4, 4 * 1152, vO3))
    A('s_lshl_b32 s%d, s%d, 1' % (sT0, sA))
    A('s_add_u32 s%d, s%d, s%d' % (sT0, sT0, sHH))
    A('s_mul_i32 s%d, s%d, %d' % (sT1, sT0, 144 * 1152))
    A('s_mul_i32 s%d, s%d, 144' % (sT2, sCB))
    A('s_add_u32 s%d, s%d, s%d' % (sT1, sT1, sT2))
    A('s_add_u32 s40, s%d, s%d' % (sWD, sT1))
    A('s_addc_u32 s41, s%d, 0' % (sWD + 1))
    for blk in range(5):
        o1, o2 = (vO1, vO2) if blk < 4 else (vO3, vO4)
        for i in range(8):
            if blk * 8 + i >= W_INFL:
                A('s_waitcnt vmcnt(%d)' % (W_INFL - 1))
            A('global_load_dwordx4 %s, v%d, s[40:41] offset:%d%s' % (vr(vR + 32 * blk + 4 * i), o1 if i < 4 else o2, (i & 3) * 1152, NT))
        if blk < 4:
            add64(40, 32 * 1152)
    p3_slot()
    lds_wait_flag(L_FL + 4, vZ, vT)
    stamp(4)
    A('v_lshlrev_b32 v%d, 4, v%d' % (vT, vG))
    ah = [16, 20, 24, 28, 4 * 0 + 0]
    ah[4] = 0
    A('v_mov_b32 v%d, v%d' % (vO2, vC))
    vCc = vO2
    for blk in range(5):
        A('ds_read_b128 %s, v%d offset:%d' % (vr(ah[blk]), vT, L_H + 64 * blk))
    A('s_waitcnt lgkmcnt(0)')
    for blk in range(5):
        A('s_waitcnt vmcnt(%d)' % (32 - 8 * blk))
        transpose8(vR + 32 * blk, vTB)
        A.nop(2)
        for j in range(8):
            A('v_mfma_f32_16x16x32_bf16 %s, %s, %s, %s' % (vr(vAcc + 4 * j), vr(ah[blk]), vr(vTB + 4 * j),
                                                            '0' if blk == 0 else vr(vAcc + 4 * j)))
    A.nop(10)
    for j in range(8):
        A('v_mov_b32 v%d, v%d' % (vTB + j, vAcc + 4 * j))
    A('v_lshlrev_b32 v%d, 5, v%d' % (vT, vCc))
    A('s_mov_b64 exec, 0x1ff')
    A('global_store_dwordx4 v%d, %s, s[48:49] offset:288 sc1' % (vT, vr(vTB)))
    A('global_store_dwordx4 v%d, %s, s[48:49] offset:304 sc1' % (vT, vr(vTB + 4)))

    A.label('L_end')
    if STAMPS:
        A('s_cmp_ge_u32 s2, 256')
        A('s_cbranch_scc1 L_end2')
        stamp(15)
        A('s_mov_b64 exec, 1')
        A('s_lshl_b32 s60, s2, 3')
        A('s_add_u32 s60, s60, s%d' % sWAVE)
        A('s_lshl_b32 s60, s60, 6')
        A('s_add_u32 s60, s60, %d' % ST_OFF)
        A('s_add_u32 s60, s%d, s60' % sWS)
        A('s_addc_u32 s61, s%d, 0' % (sWS + 1))
        A('v_mov_b32 v8, 0')
        for i in range(16):
            A('v_mov_b32 v9, s%d' % (64 + i))
            A('global_store_dword v8, v9, s[60:61] offset:%d' % (4 * i))
        A.label('L_end2')
    A('s_endpgm')
    A.l.append('.section .rodata,"a"')
    A.l.append('.p2align 6')
    A.l.append('.amdhsa_kernel %s_kernel' % NAME)
    A.l.append('  .amdhsa_next_free_vgpr 256')
    A.l.append('  .amdhsa_next_free_sgpr 96')
    A.l.append('  .amdhsa_accum_offset 256')
    A.l.append('  .amdhsa_group_segment_fixed_size 0')
    A.l.append('  .amdhsa_kernarg_size 96')
    A.l.append('  .amdhsa_user_sgpr_count 2')
    A.l.append('  .amdhsa_user_sgpr_kernarg_segment_ptr 1')
    A.l.append('  .amdhsa_system_sgpr_workgroup_id_x 1')
    A.l.append('.end_amdhsa_kernel')


gen()
out = sys.argv[1] if len(sys.argv) > 1 else 'cdna_kernels/%s.s' % NAME
open(out, 'w').write('\n'.join(A.l) + '\n')
print('wrote', out, len(A.l), 'lines')
```

```python
import sys

NAME = 'parallel_sum__gqa_block_cached__swiglu_ffn__decode'
HDR = open('cdna_kernels/%s.s.ref' % NAME).read().split('; Override launch')[0]

NT = ' nt'
SPIN = 400000
import os
KV_INFL = int(os.environ.get('KV_INFL', '8'))
W_INFL = int(os.environ.get('W_INFL', '4'))

L_FL = 0
L_Q = 256
L_H = 768
L_OB = 1152
L_ML = 1408
L_OC = 2048
L_K = 8192
LDS_BYTES = L_K + 4 * 32768

P1_OFF = 0
P2_OFF = 1 << 20
P3_OFF = 2 << 20
P2_SLOT = 640
P3_SLOT = 576
IB_OFF = 3 << 20

sX, sK, sV, sWQ, sWO, sBX, sWG, sWU, sWD, sOUT, sDBG, sWS = [8 + 2 * i for i in range(12)]
sA, sB, sWAVE, sHH, sCB = 32, 33, 34, 35, 36
sSELLO, sSELHI, sMASKHI, sLOG2E, sSPIN, sONES = 37, 38, 39, 44, 45, 46
sT0, sT1, sT2, sT3 = 52, 53, 54, 55
sT4, sT5, sT6, sT7 = 56, 57, 58, 59


STAMPS = bool(int(__import__('os').environ.get('STAMPS', '0')))
ST_OFF = 8 << 20

class Asm:
    def __init__(self):
        self.l = []
        self.n = 0

    def __call__(self, s):
        self.l.append('    ' + s)

    def label(self, s):
        self.l.append(s + ':')

    def c(self, s):
        self.l.append('    ; ' + s)

    def newlabel(self, p):
        self.n += 1
        return 'L_%s_%d' % (p, self.n)

    def nop(self, n):
        while n > 0:
            k = min(n, 16)
            self('s_nop %d' % (k - 1))
            n -= k


A = Asm()


def stamp(i):
    if not STAMPS:
        return
    A('s_memrealtime s[62:63]')
    A('s_waitcnt lgkmcnt(0)')
    A('s_mov_b32 s%d, s62' % (64 + i))


def sp(r):
    return 's[%d:%d]' % (r, r + 1)


def vr(r, n=4):
    return 'v[%d:%d]' % (r, r + n - 1)


def allreduce(op, v, t):
    for d in ['quad_perm:[1,0,3,2]', 'quad_perm:[2,3,0,1]', 'row_half_mirror', 'row_mirror']:
        A.nop(2)
        A('v_%s_f32_dpp v%d, v%d, v%d %s row_mask:0xf bank_mask:0xf' % (op, v, v, v, d))
    xrow(op, v, t)


def xrow(op, v, t):
    for sw in ['v_permlane16_swap_b32', 'v_permlane32_swap_b32']:
        A('v_mov_b32 v%d, v%d' % (t, v))
        A.nop(2)
        A('%s v%d, v%d' % (sw, v, t))
        A('v_%s_f32 v%d, v%d, v%d' % (op, v, v, t))


def xhalf(op, v, t):
    A('v_mov_b32 v%d, v%d' % (t, v))
    A.nop(2)
    A('v_permlane32_swap_b32 v%d, v%d' % (v, t))
    A('v_%s_f32 v%d, v%d, v%d' % (op, v, v, t))


def rne(v):
    A('v_cvt_pk_bf16_f32 v%d, v%d, v%d' % (v, v, v))
    A('v_lshlrev_b32 v%d, 16, v%d' % (v, v))


def rne2(a, b, t):
    A('v_cvt_pk_bf16_f32 v%d, v%d, v%d' % (t, a, b))
    A('v_lshlrev_b32 v%d, 16, v%d' % (a, t))
    A('v_and_b32 v%d, s%d, v%d' % (b, sMASKHI, t))


def add64(s, imm):
    A('s_add_u32 s%d, s%d, %d' % (s, s, imm))
    A('s_addc_u32 s%d, s%d, 0' % (s + 1, s + 1))


def lds_wait_flag(off, vz, vt):
    lp = A.newlabel('lw')
    dn = A.newlabel('lwd')
    A('s_mov_b32 s%d, %d' % (sSPIN, SPIN * 8))
    A.label(lp)
    A('ds_read_b32 v%d, v%d offset:%d' % (vt, vz, off))
    A('s_waitcnt lgkmcnt(0)')
    A('v_readfirstlane_b32 s%d, v%d' % (sT0, vt))
    A('s_cmp_lg_u32 s%d, 0' % sT0)
    A('s_cbranch_scc1 %s' % dn)
    A('s_sleep 1')
    A('s_sub_u32 s%d, s%d, 1' % (sSPIN, sSPIN))
    A('s_cmp_lg_u32 s%d, 0' % sSPIN)
    A('s_cbranch_scc1 %s' % lp)
    A.label(dn)


def transpose8(src, dst):
    for j in range(8):
        for q in range(4):
            A('v_perm_b32 v%d, v%d, v%d, s%d' % (dst + 4 * j + q, src + 4 * (2 * q + 1) + (j >> 1),
                                                  src + 4 * (2 * q) + (j >> 1), sSELHI if j & 1 else sSELLO))


def gen():
    A.l.append(HDR.rstrip('\n'))
    A.l.append('; @launch grid=(256,1,1) block=(512,1,1) lds=%d' % LDS_BYTES)
    A.l.append('.amdgcn_target "amdgcn-amd-amdhsa--gfx950"')
    A.l.append('.text')
    A.l.append('.globl %s_kernel' % NAME)
    A.l.append('.p2align 8')
    A.l.append('.type %s_kernel,@function' % NAME)
    A.label('%s_kernel' % NAME)
    A('s_cmp_ge_u32 s2, 256')
    A('s_cbranch_scc1 L_end')
    A('s_load_dwordx16 s[8:23], s[0:1], 0')
    A('s_load_dwordx8 s[24:31], s[0:1], 64')
    vLane, vC, vG, vZ = 1, 3, 4, 7
    if STAMPS:
        for i in range(16):
            A('s_mov_b32 s%d, 0' % (64 + i))
        stamp(0)
    A('v_and_b32 v1, 63, v0')
    A('v_lshrrev_b32 v2, 6, v0')
    A('v_and_b32 v%d, 15, v1' % vC)
    A('v_lshrrev_b32 v%d, 4, v1' % vG)
    A('v_mov_b32 v%d, 0' % vZ)
    A('v_readfirstlane_b32 s%d, v2' % sWAVE)
    A('s_and_b32 s%d, s2, 7' % sA)
    A('s_lshl_b32 s%d, s%d, 1' % (sA, sA))
    A('s_bfe_u32 s3, s2, 0x10003')
    A('s_or_b32 s%d, s%d, s3' % (sA, sA))
    A('s_lshr_b32 s%d, s2, 4' % sB)
    A('s_lshr_b32 s%d, s%d, 3' % (sHH, sB))
    A('s_and_b32 s%d, s%d, 7' % (sCB, sB))
    A('s_mov_b32 s%d, 0x05040100' % sSELLO)
    A('s_mov_b32 s%d, 0x07060302' % sSELHI)
    A('s_mov_b32 s%d, 0xffff0000' % sMASKHI)
    A('s_mov_b32 s%d, 0x3fb8aa3b' % sLOG2E)
    A('s_mov_b32 s%d, 0x01010101' % sONES)
    A('s_cmp_ge_u32 s%d, 4' % sWAVE)
    A('s_cbranch_scc1 L_aux')

    A.c('---------------- KV waves')
    vKoff, vVoff, vT = 5, 6, 8
    vQ, vS, vKt, vAcc, vV = 16, 32, 64, 96, 128
    vP = 16
    A('s_cmp_lg_u32 s%d, 0' % sWAVE)
    A('s_cbranch_scc1 L_kv_noinit')
    A('v_mov_b32 v8, 0')
    A('v_mov_b32 v9, 0')
    A('v_mov_b32 v10, 0')
    A('v_mov_b32 v11, 0')
    A('v_lshlrev_b32 v12, 4, v%d' % vLane)
    A('ds_write_b128 v12, v[8:11]')
    A('ds_write_b128 v12, v[8:11] offset:1024')
    A('s_waitcnt lgkmcnt(0)')
    A.label('L_kv_noinit')
    A('v_lshlrev_b32 v%d, 8, v%d' % (vKoff, vC))
    A('v_lshl_add_u32 v%d, v%d, 4, v%d' % (vKoff, vG, vKoff))
    A('v_lshlrev_b32 v%d, 10, v%d' % (vVoff, vG))
    A('v_lshl_add_u32 v%d, v%d, 4, v%d' % (vVoff, vC, vVoff))
    A('s_lshl_b32 s%d, s%d, 21' % (sT4, sA))
    A('s_lshl_b32 s%d, s%d, 17' % (sT5, sB))
    A('s_add_u32 s%d, s%d, s%d' % (sT4, sT4, sT5))
    A('s_lshl_b32 s%d, s%d, 15' % (sT5, sWAVE))
    A('s_add_u32 s%d, s%d, s%d' % (sT4, sT4, sT5))
    A('s_add_u32 s%d, s%d, %d' % (sT6, sT5, L_K))
    A('s_waitcnt lgkmcnt(0)')
    A('s_barrier')
    A('s_add_u32 s40, s%d, s%d' % (sK, sT4))
    A('s_addc_u32 s41, s%d, 0' % (sK + 1))
    A('s_add_u32 s42, s%d, s%d' % (sV, sT4))
    A('s_addc_u32 s43, s%d, 0' % (sV + 1))
    nld = 0
    for t in range(8):
        for j in range(4):
            A('s_add_u32 m0, s%d, %d' % (sT6, (4 * t + j) * 1024 - 64 * j))
            if nld >= KV_INFL:
                A('s_waitcnt vmcnt(%d)' % (KV_INFL - 1))
            else:
                A('s_nop 0')
            A('global_load_lds_dwordx4 v%d, s[40:41] offset:%d%s' % (vKoff, 64 * j, NT))
            nld += 1
        add64(40, 4096)
    for u in range(4):
        for hf in range(2):
            for i in range(4):
                if nld >= KV_INFL:
                    A('s_waitcnt vmcnt(%d)' % (KV_INFL - 1))
                A('global_load_dwordx4 %s, v%d, s[42:43] offset:%d%s' % (vr(vV + (u * 8 + hf * 4 + i) * 4), vVoff, i * 256, NT))
                nld += 1
            add64(42, 4096)
    stamp(1)
    A.c('wait for q')
    lds_wait_flag(L_FL + 0, vZ, vT)
    stamp(2)
    A('v_and_b32 v%d, 1, v%d' % (vT, vLane))
    A('v_lshlrev_b32 v%d, 8, v%d' % (vT, vT))
    A('v_lshl_add_u32 v%d, v%d, 4, v%d' % (vT, vG, vT))
    for j in range(4):
        A('ds_read_b128 %s, v%d offset:%d' % (vr(vQ + 4 * j), vT, L_Q + 64 * j))
    A('v_lshlrev_b32 v%d, 4, v%d' % (vT + 1, vLane))
    A('v_add_u32 v%d, s%d, v%d' % (vT + 1, sT6, vT + 1))
    A('s_waitcnt vmcnt(32)')
    stamp(3)
    for bt in range(4):
        for tt in range(2):
            for j in range(4):
                A('ds_read_b128 %s, v%d offset:%d' % (vr(vKt + (tt * 4 + j) * 4), vT + 1, ((2 * bt + tt) * 4 + j) * 1024))
        A('s_waitcnt lgkmcnt(0)')
        for tt in range(2):
            t = 2 * bt + tt
            for j in range(4):
                A('v_mfma_f32_16x16x32_bf16 %s, %s, %s, %s' % (vr(vS + 4 * t), vr(vKt + (tt * 4 + j) * 4), vr(vQ + 4 * j),
                                                                '0' if j == 0 else vr(vS + 4 * t)))
    A.nop(10)
    A.c('round scores like the reference: bf16(bf16(raw) * scale)')
    A('s_mov_b32 s%d, 0x3db504f3' % sT0)
    for k in range(0, 32, 2):
        rne2(vS + k, vS + k + 1, vT)
        A('v_mul_f32 v%d, s%d, v%d' % (vS + k, sT0, vS + k))
        A('v_mul_f32 v%d, s%d, v%d' % (vS + k + 1, sT0, vS + k + 1))
        rne2(vS + k, vS + k + 1, vT)
    vM, vL = 10, 11
    A('v_max3_f32 v%d, v%d, v%d, v%d' % (vM, vS, vS + 1, vS + 2))
    for k in range(3, 31, 2):
        A('v_max3_f32 v%d, v%d, v%d, v%d' % (vM, vM, vS + k, vS + k + 1))
    A('v_max_f32 v%d, v%d, v%d' % (vM, vM, vS + 31))
    xrow('max', vM, vT)
    for k in range(32):
        A('v_sub_f32 v%d, v%d, v%d' % (vS + k, vS + k, vM))
        A('v_mul_f32 v%d, s%d, v%d' % (vS + k, sLOG2E, vS + k))
        A('v_exp_f32 v%d, v%d' % (vS + k, vS + k))
    A.nop(1)
    A('v_add_f32 v%d, v%d, v%d' % (vL, vS, vS + 1))
    for k in range(2, 32):
        A('v_add_f32 v%d, v%d, v%d' % (vL, vL, vS + k))
    xrow('add', vL, vT)
    for k in range(16):
        A('v_cvt_pk_bf16_f32 v%d, v%d, v%d' % (vP + k, vS + 2 * k, vS + 2 * k + 1))
    stamp(4)
    A.c('PV')
    for u in range(4):
        A('s_waitcnt vmcnt(%d)' % (24 - 8 * u))
        transpose8(vV + 32 * u, vKt)
        A.nop(2)
        for j in range(8):
            A('v_mfma_f32_16x16x32_bf16 %s, %s, %s, %s' % (vr(vAcc + 4 * j), vr(vP + 4 * u), vr(vKt + 4 * j),
                                                            '0' if u == 0 else vr(vAcc + 4 * j)))
    A.nop(10)
    stamp(5)
    A.c('write o partial of this wave to LDS')
    for hd in range(2):
        for j in range(8):
            A('v_mov_b32 v%d, v%d' % (vS + 8 * hd + j, vAcc + 4 * j + hd))
    A('s_lshl_b32 s%d, s%d, 10' % (sT0, sWAVE))
    A('v_lshlrev_b32 v%d, 5, v%d' % (vT, vC))
    A('v_add_u32 v%d, s%d, v%d' % (vT, sT0, vT))
    A('s_lshl_b32 s%d, s%d, 4' % (sT0, sWAVE))
    A('v_lshlrev_b32 v%d, 3, v%d' % (vT + 1, vLane))
    A('v_add_u32 v%d, s%d, v%d' % (vT + 1, sT0, vT + 1))
    A('s_mov_b64 exec, 0xffff')
    for hd in range(2):
        A('ds_write_b128 v%d, %s offset:%d' % (vT, vr(vS + 8 * hd), L_OC + 512 * hd))
        A('ds_write_b128 v%d, %s offset:%d' % (vT, vr(vS + 8 * hd + 4), L_OC + 512 * hd + 16))
    A('s_mov_b64 exec, 3')
    A('ds_write_b64 v%d, v[%d:%d] offset:%d' % (vT + 1, vM, vL, L_ML))
    A('s_mov_b64 exec, 1')
    A('v_mov_b32 v%d, 1' % vT)
    A('s_waitcnt lgkmcnt(0)')
    A('ds_add_rtn_u32 v%d, v%d, v%d offset:%d' % (vT, vZ, vT, L_FL + 12))
    A('s_waitcnt lgkmcnt(0)')
    A('v_readfirstlane_b32 s%d, v%d' % (sT0, vT))
    A('s_mov_b64 exec, -1')
    A('s_cmp_lg_u32 s%d, 3' % sT0)
    A('s_cbranch_scc1 L_end')
    A.c('last KV wave: combine the four partials and publish')
    vHd, vKk = 12, 13
    A('v_lshrrev_b32 v%d, 5, v%d' % (vHd, vLane))
    A('v_and_b32 v%d, 31, v%d' % (vKk, vLane))
    A('v_lshlrev_b32 v%d, 4, v%d' % (vT, vLane))
    A('v_lshlrev_b32 v%d, 3, v%d' % (vT + 1, vHd))
    for w in range(4):
        A('ds_read_b128 %s, v%d offset:%d' % (vr(vS + 4 * w), vT, L_OC + 1024 * w))
        A('ds_read_b64 v[%d:%d], v%d offset:%d' % (vS + 16 + 2 * w, vS + 17 + 2 * w, vT + 1, L_ML + 16 * w))
    A('s_waitcnt lgkmcnt(0)')
    m_ = [vS + 16 + 2 * w for w in range(4)]
    l_ = [vS + 17 + 2 * w for w in range(4)]
    A('v_max3_f32 v%d, v%d, v%d, v%d' % (vM, m_[0], m_[1], m_[2]))
    A('v_max_f32 v%d, v%d, v%d' % (vM, vM, m_[3]))
    for w in range(4):
        A('v_sub_f32 v%d, v%d, v%d' % (m_[w], m_[w], vM))
        A('v_mul_f32 v%d, s%d, v%d' % (m_[w], sLOG2E, m_[w]))
        A('v_exp_f32 v%d, v%d' % (m_[w], m_[w]))
    A.nop(1)
    A('v_mul_f32 v%d, v%d, v%d' % (vL, m_[0], l_[0]))
    for w in range(1, 4):
        A('v_fmac_f32 v%d, v%d, v%d' % (vL, m_[w], l_[w]))
    vO = vS + 24
    for e in range(4):
        A('v_mul_f32 v%d, v%d, v%d' % (vO + e, m_[0], vS + e))
        for w in range(1, 4):
            A('v_fmac_f32 v%d, v%d, v%d' % (vO + e, m_[w], vS + 4 * w + e))
    A('s_lshl_b32 s%d, s%d, 5' % (sT0, sA))
    A('s_add_u32 s%d, s%d, s%d' % (sT0, sT0, sB))
    A('s_mul_i32 s%d, s%d, %d' % (sT0, sT0, P2_SLOT))
    A('s_add_u32 s%d, s%d, %d' % (sT0, sT0, P2_OFF))
    A('s_add_u32 s40, s%d, s%d' % (sWS, sT0))
    A('s_addc_u32 s41, s%d, 0' % (sWS + 1))
    A('v_mul_u32_u24 v%d, %d, v%d' % (vT, 16 * P2_SLOT, vHd))
    A('v_lshl_add_u32 v%d, v%d, 4, v%d' % (vT + 1, vKk, vT))
    A('global_store_dwordx4 v%d, %s, s[40:41] sc1' % (vT + 1, vr(vO)))
    A('s_mov_b32 s%d, 1' % sT0)
    A('s_mov_b32 s%d, 1' % sT1)
    A('s_mov_b64 exec, s[%d:%d]' % (sT0, sT1))
    A('global_store_dwordx2 v%d, v[%d:%d], s[40:41] offset:512 sc1' % (vT, vM, vL))
    A('s_branch L_end')

    A.label('L_aux')
    A.c('---------------- aux waves: stage 1')
    A('s_setprio 3')
    sXW = 47
    A('s_sub_u32 s%d, s%d, 4' % (sXW, sWAVE))
    vHalf, vCi, vCh, vT = 5, 6, 19, 8
    vAdr, vStr = 14, 16
    vXs = 20
    vAc = 32
    vXr = 96
    vW = 128
    A('v_lshrrev_b32 v%d, 5, v%d' % (vHalf, vLane))
    A('v_and_b32 v%d, 31, v%d' % (vCi, vLane))
    A('v_min_u32 v%d, 25, v%d' % (vCh, vCi))
    A('s_mul_i32 s%d, s%d, 26' % (sT0, sXW))
    A('v_add_u32 v%d, s%d, v%d' % (vCh, sT0, vCh))
    A('s_mul_i32 s%d, s%d, 36' % (sT1, sB))
    A('v_add_u32 v%d, s%d, v%d' % (vT, sT1, vHalf))
    A('v_lshlrev_b32 v%d, 1, v%d' % (vT + 1, vLane))
    A('v_lshlrev_b32 v%d, 1, v%d' % (vT + 2, vT))
    A('s_waitcnt lgkmcnt(0)')
    for k in range(9):
        A('global_load_ushort v%d, v%d, %s offset:%d' % (vXs + k, vT + 1, sp(sX), 128 * k))
    for i in range(18):
        A('global_load_ushort v%d, v%d, %s offset:%d' % (vXr + i, vT + 2, sp(sX), 4 * i))
    A('s_lshl_b32 s%d, s%d, 9' % (sT0, sA))
    A('s_add_u32 s40, s%d, s%d' % (sWQ, sT0))
    A('s_addc_u32 s41, s%d, 0' % (sWQ + 1))
    A('s_mul_i32 s%d, s%d, 576' % (sT0, sA))
    A('s_add_u32 s42, s%d, s%d' % (sWG, sT0))
    A('s_addc_u32 s43, s%d, 0' % (sWG + 1))
    A('s_sub_u32 s42, s42, 512')
    A('s_subb_u32 s43, s43, 0')
    A('s_add_u32 s48, s%d, s%d' % (sWU, sT0))
    A('s_addc_u32 s49, s%d, 0' % (sWU + 1))
    A('s_sub_u32 s48, s48, 1088')
    A('s_subb_u32 s49, s49, 0')
    A('v_mov_b32 v%d, s40' % vAdr)
    A('v_mov_b32 v%d, s41' % (vAdr + 1))
    A('v_mov_b32 v%d, 0x2000' % vStr)
    A('v_mov_b32 v%d, s42' % (vT + 3))
    A('v_mov_b32 v%d, s43' % (vT + 4))
    A('v_mov_b32 v%d, 0x2400' % (vT + 5))
    A('v_cmp_lt_u32 vcc, 31, v%d' % vCh)
    A.nop(2)
    A('v_cndmask_b32 v%d, v%d, v%d, vcc' % (vAdr, vAdr, vT + 3))
    A('v_cndmask_b32 v%d, v%d, v%d, vcc' % (vAdr + 1, vAdr + 1, vT + 4))
    A('v_cndmask_b32 v%d, v%d, v%d, vcc' % (vStr, vStr, vT + 5))
    A('v_mov_b32 v%d, s48' % (vT + 3))
    A('v_mov_b32 v%d, s49' % (vT + 4))
    A('v_cmp_lt_u32 vcc, 67, v%d' % vCh)
    A.nop(2)
    A('v_cndmask_b32 v%d, v%d, v%d, vcc' % (vAdr, vAdr, vT + 3))
    A('v_cndmask_b32 v%d, v%d, v%d, vcc' % (vAdr + 1, vAdr + 1, vT + 4))
    A('v_mul_lo_u32 v%d, v%d, v%d' % (vT + 3, vT, vStr))
    A('v_lshl_add_u32 v%d, v%d, 4, v%d' % (vT + 3, vCh, vT + 3))
    A('v_add_co_u32 v%d, vcc, v%d, v%d' % (vAdr, vAdr, vT + 3))
    A('v_addc_co_u32 v%d, vcc, 0, v%d, vcc' % (vAdr + 1, vAdr + 1))
    A('v_lshlrev_b32 v%d, 1, v%d' % (vStr, vStr))
    for i in range(18):
        A('global_load_dwordx4 %s, v[%d:%d], off%s' % (vr(vW + 4 * i), vAdr, vAdr + 1, NT))
        if i < 17:
            A('v_add_co_u32 v%d, vcc, v%d, v%d' % (vAdr, vAdr, vStr))
            A('v_addc_co_u32 v%d, vcc, 0, v%d, vcc' % (vAdr + 1, vAdr + 1))
    A('s_barrier')
    stamp(1)
    A.c('layernorm statistics')
    A('s_waitcnt vmcnt(36)')
    vSum, vMean, vRs, vSd = 29, 30, 17, 18
    for k in range(9):
        A('v_lshlrev_b32 v%d, 16, v%d' % (vXs + k, vXs + k))
    A('v_add_f32 v%d, v%d, v%d' % (vSum, vXs, vXs + 1))
    for k in range(2, 9):
        A('v_add_f32 v%d, v%d, v%d' % (vSum, vSum, vXs + k))
    allreduce('add', vSum, vT)
    A('v_mul_f32 v%d, 0x3ae38e39, v%d' % (vMean, vSum))
    for k in range(9):
        A('v_sub_f32 v%d, v%d, v%d' % (vXs + k, vXs + k, vMean))
    A('v_mul_f32 v%d, v%d, v%d' % (vSum, vXs, vXs))
    for k in range(1, 9):
        A('v_fmac_f32 v%d, v%d, v%d' % (vSum, vXs + k, vXs + k))
    allreduce('add', vSum, vT)
    A('v_mul_f32 v%d, 0x3ae38e39, v%d' % (vSum, vSum))
    rne(vSum)
    A('v_add_f32 v%d, 0x3727c5ac, v%d' % (vSum, vSum))
    rne(vSum)
    A('v_sqrt_f32 v%d, v%d' % (vSd, vSum))
    A.nop(1)
    rne(vSd)
    A('v_rcp_f32 v%d, v%d' % (vRs, vSd))
    rne(vMean)
    A('s_waitcnt vmcnt(18)')
    for i in range(18):
        r = vXr + i
        A('v_lshlrev_b32 v%d, 16, v%d' % (r, r))
        A('v_sub_f32 v%d, v%d, v%d' % (r, r, vMean))
        rne(r)
        A('v_mul_f32 v%d, v%d, v%d' % (vT, r, vRs))
        A('v_fma_f32 v%d, -v%d, v%d, v%d' % (vT + 1, vT, vSd, r))
        A('v_fma_f32 v%d, v%d, v%d, v%d' % (r, vT + 1, vRs, vT))
        rne(r)
    for e in range(8):
        A('v_mov_b32 v%d, 0' % (vAc + e))
    for i in range(18):
        A('s_waitcnt vmcnt(%d)' % (17 - i))
        for r in range(4):
            A('v_lshlrev_b32 v%d, 16, v%d' % (vT, vW + 4 * i + r))
            A('v_and_b32 v%d, s%d, v%d' % (vT + 1, sMASKHI, vW + 4 * i + r))
            A('v_fmac_f32 v%d, v%d, v%d' % (vAc + 2 * r, vXr + i, vT))
            A('v_fmac_f32 v%d, v%d, v%d' % (vAc + 2 * r + 1, vXr + i, vT + 1))
    for e in range(8):
        xhalf('add', vAc + e, vT)
    stamp(2)
    A.c('publish stage-1 partials')
    A('s_lshl_b32 s%d, s%d, 4' % (sT0, sA))
    A('s_add_u32 s%d, s%d, s%d' % (sT0, sT0, sB))
    A('s_lshl_b32 s%d, s%d, 12' % (sT1, sT0))
    A('s_add_u32 s40, s%d, s%d' % (sWS, sT1))
    A('s_addc_u32 s41, s%d, 0' % (sWS + 1))
    A('v_lshlrev_b32 v%d, 5, v%d' % (vT, vCh))
    A('s_mov_b64 exec, 0x3ffffff')
    A('global_store_dwordx4 v%d, %s, s[40:41] sc1' % (vT, vr(vAc)))
    A('global_store_dwordx4 v%d, %s, s[40:41] offset:16 sc1' % (vT, vr(vAc + 4)))
    A('s_mov_b64 exec, -1')
    A('s_cmp_lg_u32 s%d, 0' % sXW)
    A('s_cbranch_scc1 L_noreset')
    A.c('x0: reset this workgroup\'s P2 / P3 slots to the sentinel')
    for e in range(4):
        A('v_mov_b32 v%d, -1' % (vXs + e))
    A('s_lshl_b32 s%d, s%d, 5' % (sT1, sA))
    A('s_add_u32 s%d, s%d, s%d' % (sT1, sT1, sB))
    A('s_mul_i32 s%d, s%d, %d' % (sT1, sT1, P2_SLOT))
    A('s_add_u32 s%d, s%d, %d' % (sT1, sT1, P2_OFF))
    A('s_add_u32 s40, s%d, s%d' % (sWS, sT1))
    A('s_addc_u32 s41, s%d, 0' % (sWS + 1))
    A('v_mul_u32_u24 v%d, %d, v%d' % (vT, 16 * P2_SLOT, vHalf))
    A('v_lshl_add_u32 v%d, v%d, 4, v%d' % (vT, vCi, vT))
    A('global_store_dwordx4 v%d, %s, s[40:41] sc1' % (vT, vr(vXs)))
    A('global_store_dwordx4 v%d, %s, s[40:41] offset:128 sc1' % (vT, vr(vXs)))
    A('s_lshl_b32 s%d, s%d, 5' % (sT1, sCB))
    A('s_lshl_b32 s%d, s%d, 1' % (sT2, sA))
    A('s_add_u32 s%d, s%d, s%d' % (sT1, sT1, sT2))
    A('s_add_u32 s%d, s%d, s%d' % (sT1, sT1, sHH))
    A('s_mul_i32 s%d, s%d, %d' % (sT1, sT1, P3_SLOT))
    A('s_add_u32 s%d, s%d, %d' % (sT1, sT1, P3_OFF))
    A('s_add_u32 s40, s%d, s%d' % (sWS, sT1))
    A('s_addc_u32 s41, s%d, 0' % (sWS + 1))
    A('v_lshlrev_b32 v%d, 4, v%d' % (vT, vLane))
    A('s_mov_b32 exec_hi, 15')
    A('global_store_dwordx4 v%d, %s, s[40:41] sc1' % (vT, vr(vXs)))
    A('s_mov_b64 exec, -1')
    A('s_lshl_b32 s%d, s%d, 10' % (sT1, sT0))
    A('s_add_u32 s%d, s%d, %d' % (sT1, sT1, IB_OFF))
    A('s_add_u32 s40, s%d, s%d' % (sWS, sT1))
    A('s_addc_u32 s41, s%d, 0' % (sWS + 1))
    A('global_store_dwordx4 v%d, %s, s[40:41] sc1' % (vT, vr(vXs)))
    A.label('L_noreset')
    A('s_waitcnt vmcnt(0)')
    A('s_mov_b64 exec, 1')
    A('v_mov_b32 v%d, 1' % vT)
    A('ds_add_rtn_u32 v%d, v%d, v%d offset:%d' % (vT + 1, vZ, vT, L_FL + 8))
    A('s_waitcnt lgkmcnt(0)')
    A('v_readfirstlane_b32 s%d, v%d' % (sT1, vT + 1))
    A('s_cmp_lg_u32 s%d, 3' % sT1)
    A('s_cbranch_scc1 L_noflag')
    A('s_lshl_b32 s%d, s%d, 2' % (sT1, sA))
    A('v_mov_b32 v%d, s%d' % (vT + 1, sT1))
    A('global_atomic_add v%d, v%d, v%d, %s offset:128 sc0 sc1' % (vT + 2, vT + 1, vT, sp(sDBG)))
    A('s_waitcnt vmcnt(0)')
    A('v_readfirstlane_b32 s%d, v%d' % (sT1, vT + 2))
    A('v_mov_b32 v%d, 2' % (vT + 2))
    A('s_cmp_lg_u32 s%d, 15' % sT1)
    A('s_cbranch_scc1 L_notlast')
    A('v_mov_b32 v%d, 64' % (vT + 1))
    A('global_atomic_add v%d, v%d, %s offset:128 sc1' % (vT + 1, vT, sp(sDBG)))
    A('v_mov_b32 v%d, 1' % (vT + 2))
    A.label('L_notlast')
    A('ds_write_b32 v%d, v%d offset:%d' % (vZ, vT + 2, L_FL + 16))
    A.label('L_noflag')
    stamp(3)
    A('s_mov_b64 exec, -1')
    A('s_cmp_eq_u32 s%d, 2' % sXW)
    A('s_cbranch_scc1 L_x2')
    A('s_cmp_eq_u32 s%d, 3' % sXW)
    A('s_cbranch_scc1 L_x3')

    lds_wait_flag(L_FL + 16, vZ, vT)
    stamp(4)
    A('s_mov_b32 s%d, s%d' % (sT7, sT0))
    A('s_lshl_b32 s%d, s%d, 16' % (sT0, sA))
    A('s_add_u32 s40, s%d, s%d' % (sWS, sT0))
    A('s_addc_u32 s41, s%d, 0' % (sWS + 1))
    A('s_lshl_b32 s%d, s%d, 14' % (sT0, sA))
    A('s_add_u32 s%d, s%d, %d' % (sT0, sT0, IB_OFF))
    A('s_add_u32 s42, s%d, s%d' % (sWS, sT0))
    A('s_addc_u32 s43, s%d, 0' % (sWS + 1))
    A('s_lshl_b32 s%d, s%d, 10' % (sT0, sB))
    A('s_add_u32 s48, s42, s%d' % sT0)
    A('s_addc_u32 s49, s43, 0')
    A('s_cmp_eq_u32 s%d, 1' % sXW)
    A('s_cbranch_scc1 L_x1')

    A('s_cmp_lg_u32 s%d, 1' % sT7)
    A('s_cbranch_scc1 L_x0_wait')
    A.c('x0 (reducer): gather q, write the 16 inboxes')
    A('v_lshlrev_b32 v%d, 4, v%d' % (vT, vLane))
    for bb in range(16):
        A('global_load_dwordx4 %s, v%d, s[40:41] sc1' % (vr(vW + 4 * bb), vT))
        if bb < 15:
            add64(40, 4096)
    for bb in range(1, 16):
        A('s_waitcnt vmcnt(%d)' % (15 - bb))
        for e in range(4):
            A('v_add_f32 v%d, v%d, v%d' % (vW + e, vW + e, vW + 4 * bb + e))
    A('v_cvt_pk_bf16_f32 v%d, v%d, v%d' % (vW, vW, vW + 1))
    A('v_cvt_pk_bf16_f32 v%d, v%d, v%d' % (vW + 1, vW + 2, vW + 3))
    A('v_lshlrev_b32 v%d, 3, v%d' % (vT, vLane))
    for bb in range(16):
        A('global_store_dwordx2 v%d, v[%d:%d], s[42:43] offset:%d sc1' % (vT, vW, vW + 1, (bb & 3) * 1024))
        if bb & 3 == 3 and bb < 15:
            add64(42, 4096)
    A.label('L_x0_wait')
    A('v_lshlrev_b32 v%d, 3, v%d' % (vT, vLane))
    A('s_mov_b32 s%d, %d' % (sSPIN, SPIN))
    A.label('L_qpoll')
    A('global_load_dwordx2 v[%d:%d], v%d, s[48:49] sc1' % (vW + 4, vW + 5, vT))
    A('s_waitcnt vmcnt(0)')
    A('v_max_u32 v%d, v%d, v%d' % (vT + 1, vW + 4, vW + 5))
    A('v_cmp_eq_u32 vcc, -1, v%d' % (vT + 1))
    A('s_cbranch_vccz L_qpoll_done')
    A('s_sleep 4')
    A('s_sub_u32 s%d, s%d, 1' % (sSPIN, sSPIN))
    A('s_cmp_lg_u32 s%d, 0' % sSPIN)
    A('s_cbranch_scc1 L_qpoll')
    A.label('L_qpoll_done')
    A('ds_write_b64 v%d, v[%d:%d] offset:%d' % (vT, vW + 4, vW + 5, L_Q))
    A('v_mov_b32 v%d, 1' % (vT + 1))
    A('s_waitcnt lgkmcnt(0)')
    A('ds_write_b32 v%d, v%d offset:%d' % (vZ, vT + 1, L_FL + 0))
    stamp(5)
    A('s_cmp_lg_u32 s%d, 0' % sB)
    A('s_cbranch_scc1 L_end')
    A.c('x0 of workgroups with b==0: final reduction for 36 output columns')
    A('s_mov_b32 s%d, %d' % (sSPIN, SPIN))
    A.label('L_apoll')
    A('global_load_dword v%d, v%d, %s offset:192 sc1' % (vXs, vZ, sp(sDBG)))
    A('s_waitcnt vmcnt(0)')
    A('v_cmp_ne_u32 vcc, 16, v%d' % vXs)
    A('s_cbranch_vccz L_apoll_done')
    A('s_sleep 8')
    A('s_sub_u32 s%d, s%d, 1' % (sSPIN, sSPIN))
    A('s_cmp_lg_u32 s%d, 0' % sSPIN)
    A('s_cbranch_scc1 L_apoll')
    A.label('L_apoll_done')
    stamp(6)
    A('s_lshr_b32 s%d, s%d, 1' % (sT0, sA))
    A('s_and_b32 s%d, s%d, 1' % (sT1, sA))
    A('s_mul_i32 s%d, s%d, %d' % (sT2, sT0, 32 * P3_SLOT))
    A('s_mul_i32 s%d, s%d, 144' % (sT3, sT1))
    A('s_add_u32 s%d, s%d, s%d' % (sT2, sT2, sT3))
    A('s_add_u32 s%d, s%d, %d' % (sT2, sT2, P3_OFF))
    A('s_add_u32 s40, s%d, s%d' % (sWS, sT2))
    A('s_addc_u32 s41, s%d, 0' % (sWS + 1))
    vC8 = 9
    A('v_min_u32 v%d, 8, v%d' % (vC8, vC))
    vOf = 96
    A('v_mul_u32_u24 v%d, %d, v%d' % (vOf, P3_SLOT, vG))
    A('v_lshl_add_u32 v%d, v%d, 4, v%d' % (vOf, vC8, vOf))
    for i in range(1, 8):
        A('v_add_u32 v%d, %d, v%d' % (vOf + i, 4 * P3_SLOT * i, vOf))
    A('s_mul_i32 s%d, s%d, 72' % (sT4, sA))
    A('v_lshlrev_b32 v%d, 3, v%d' % (vOf + 8, vC8))
    A('v_add_u32 v%d, s%d, v%d' % (vOf + 8, sT4, vOf + 8))
    A('global_load_dwordx2 v[%d:%d], v%d, %s' % (vOf + 10, vOf + 11, vOf + 8, sp(sX)))
    A('s_mov_b32 s%d, %d' % (sSPIN, SPIN))
    A.label('L_fpoll')
    for i in range(8):
        A('global_load_dwordx4 %s, v%d, s[40:41] sc1' % (vr(vW + 8 * i), vOf + i))
        A('global_load_dwordx4 %s, v%d, s[40:41] offset:288 sc1' % (vr(vW + 8 * i + 4), vOf + i))
    A('s_waitcnt vmcnt(0)')
    A('v_max3_u32 v%d, v%d, v%d, v%d' % (vT, vW, vW + 1, vW + 2))
    for k in range(3, 63, 2):
        A('v_max3_u32 v%d, v%d, v%d, v%d' % (vT, vT, vW + k, vW + k + 1))
    A('v_max_u32 v%d, v%d, v%d' % (vT, vT, vW + 63))
    A('v_cmp_eq_u32 vcc, -1, v%d' % vT)
    A('s_cbranch_vccz L_fpoll_done')
    A('s_sub_u32 s%d, s%d, 1' % (sSPIN, sSPIN))
    A('s_cmp_lg_u32 s%d, 0' % sSPIN)
    A('s_cbranch_scc1 L_fpoll')
    A.label('L_fpoll_done')
    stamp(7)
    for i in range(1, 8):
        for e in range(8):
            A('v_add_f32 v%d, v%d, v%d' % (vW + e, vW + e, vW + 8 * i + e))
    for e in range(8):
        xrow('add', vW + e, vT)
    for e in range(0, 8, 2):
        rne2(vW + e, vW + e + 1, vT)
    A('v_lshlrev_b32 v%d, 16, v%d' % (vW + 8, vOf + 10))
    A('v_and_b32 v%d, s%d, v%d' % (vW + 9, sMASKHI, vOf + 10))
    A('v_lshlrev_b32 v%d, 16, v%d' % (vW + 10, vOf + 11))
    A('v_and_b32 v%d, s%d, v%d' % (vW + 11, sMASKHI, vOf + 11))
    for e in range(4):
        A('v_add_f32 v%d, v%d, v%d' % (vW + e, vW + e, vW + 8 + e))
    rne2(vW, vW + 1, vT)
    rne2(vW + 2, vW + 3, vT)
    for e in range(4):
        A('v_add_f32 v%d, v%d, v%d' % (vW + e, vW + e, vW + 4 + e))
    A('v_cvt_pk_bf16_f32 v%d, v%d, v%d' % (vW + 8, vW, vW + 1))
    A('v_cvt_pk_bf16_f32 v%d, v%d, v%d' % (vW + 9, vW + 2, vW + 3))
    A('s_mov_b64 exec, 0x1ff')
    A('global_store_dwordx2 v%d, v[%d:%d], %s' % (vOf + 8, vW + 8, vW + 9, sp(sOUT)))
    if STAMPS:
        stamp(8)
        A('s_mov_b64 exec, 1')
        A('s_sub_u32 s%d, s72, s64' % sT0)
        A('s_lshl_b32 s%d, s%d, 2' % (sT1, sA))
        A('v_mov_b32 v%d, s%d' % (vT, sT0))
        A('v_mov_b32 v%d, s%d' % (vT + 1, sT1))
        A('global_store_dword v%d, v%d, %s' % (vT + 1, vT, sp(sDBG)))
    A('s_branch L_end')

    A.label('L_x1')
    A('s_cmp_lg_u32 s%d, 1' % sT7)
    A('s_cbranch_scc1 L_x1_wait')
    A.c('x1 (reducer): gather gate/up, compute h, write the inboxes')
    A('v_min_u32 v%d, 35, v%d' % (vT + 2, vLane))
    A('v_lshlrev_b32 v%d, 3, v%d' % (vT + 3, vT + 2))
    A('v_lshlrev_b32 v%d, 4, v%d' % (vT + 2, vT + 2))
    for hh in range(2):
        A('v_add_u32 v%d, %d, v%d' % (vT, 1024 + 576 * hh, vT + 2))
        A('s_mov_b32 s50, s40')
        A('s_mov_b32 s51, s41')
        for bb in range(16):
            A('global_load_dwordx4 %s, v%d, s[50:51] sc1' % (vr(vW + 8 * bb), vT))
            A('global_load_dwordx4 %s, v%d, s[50:51] offset:1152 sc1' % (vr(vW + 8 * bb + 4), vT))
            if bb < 15:
                add64(50, 4096)
        for bb in range(1, 16):
            A('s_waitcnt vmcnt(%d)' % (30 - 2 * bb))
            for e in range(8):
                A('v_add_f32 v%d, v%d, v%d' % (vW + e, vW + e, vW + 8 * bb + e))
        for e in range(0, 8, 2):
            rne2(vW + e, vW + e + 1, vT + 1)
        for e in range(4):
            g = vW + e
            A('v_mul_f32 v%d, s%d, v%d' % (vW + 8 + e, sLOG2E, g))
            A('v_exp_f32 v%d, -v%d' % (vW + 8 + e, vW + 8 + e))
            A.nop(1)
            A('v_add_f32 v%d, 1.0, v%d' % (vW + 8 + e, vW + 8 + e))
            A('v_rcp_f32 v%d, v%d' % (vW + 8 + e, vW + 8 + e))
            A.nop(1)
            A('v_mul_f32 v%d, v%d, v%d' % (g, g, vW + 8 + e))
        rne2(vW, vW + 1, vT + 1)
        rne2(vW + 2, vW + 3, vT + 1)
        for e in range(4):
            A('v_mul_f32 v%d, v%d, v%d' % (vW + e, vW + e, vW + 4 + e))
        A('v_cvt_pk_bf16_f32 v%d, v%d, v%d' % (vAc + 2 * hh, vW, vW + 1))
        A('v_cvt_pk_bf16_f32 v%d, v%d, v%d' % (vAc + 2 * hh + 1, vW + 2, vW + 3))
        A('s_mov_b32 exec_hi, 15')
        for bb in range(8):
            A('global_store_dwordx2 v%d, v[%d:%d], s[42:43] offset:%d sc1' % (vT + 3, vAc + 2 * hh, vAc + 2 * hh + 1, 512 + (bb & 3) * 1024))
            if bb & 3 == 3:
                add64(42, 4096)
        A('s_mov_b64 exec, -1')
    A.label('L_x1_wait')
    A('v_min_u32 v%d, 35, v%d' % (vT, vLane))
    A('v_lshlrev_b32 v%d, 3, v%d' % (vT, vT))
    A('s_mov_b32 s%d, %d' % (sSPIN, SPIN))
    A.label('L_hpoll')
    A('global_load_dwordx2 v[%d:%d], v%d, s[48:49] offset:512 sc1' % (vW + 4, vW + 5, vT))
    A('s_waitcnt vmcnt(0)')
    A('v_max_u32 v%d, v%d, v%d' % (vT + 1, vW + 4, vW + 5))
    A('v_cmp_eq_u32 vcc, -1, v%d' % (vT + 1))
    A('s_cbranch_vccz L_hpoll_done')
    A('s_sleep 8')
    A('s_sub_u32 s%d, s%d, 1' % (sSPIN, sSPIN))
    A('s_cmp_lg_u32 s%d, 0' % sSPIN)
    A('s_cbranch_scc1 L_hpoll')
    A.label('L_hpoll_done')
    A('ds_write_b64 v%d, v[%d:%d] offset:%d' % (vT, vW + 4, vW + 5, L_H))
    A('v_mov_b32 v%d, 1' % (vT + 1))
    A('s_waitcnt lgkmcnt(0)')
    A('ds_write_b32 v%d, v%d offset:%d' % (vZ, vT + 1, L_FL + 4))
    A('s_branch L_end')

    def p3_slot():
        A('s_lshl_b32 s%d, s%d, 5' % (sT1, sCB))
        A('s_lshl_b32 s%d, s%d, 1' % (sT0, sA))
        A('s_add_u32 s%d, s%d, s%d' % (sT1, sT1, sT0))
        A('s_add_u32 s%d, s%d, s%d' % (sT1, sT1, sHH))
        A('s_mul_i32 s%d, s%d, %d' % (sT1, sT1, P3_SLOT))
        A('s_add_u32 s%d, s%d, %d' % (sT1, sT1, P3_OFF))
        A('s_add_u32 s48, s%d, s%d' % (sWS, sT1))
        A('s_addc_u32 s49, s%d, 0' % (sWS + 1))

    A.label('L_x2')
    A.c('x2: wo tile (128 rows x 72 cols)')
    A('s_setprio 0')
    vC8, vO1, vO2 = 9, 12, 13
    vR = 128
    vTB = 96
    vAcc = 32
    A('v_min_u32 v%d, 8, v%d' % (vC8, vC))
    A('v_mul_u32_u24 v%d, %d, v%d' % (vO1, 8 * 1152, vG))
    A('v_lshl_add_u32 v%d, v%d, 4, v%d' % (vO1, vC8, vO1))
    A('v_add_u32 v%d, %d, v%d' % (vO2, 4 * 1152, vO1))
    A('s_lshl_b32 s%d, s%d, 1' % (sT0, sA))
    A('s_add_u32 s%d, s%d, s%d' % (sT0, sT0, sHH))
    A('s_mul_i32 s%d, s%d, %d' % (sT1, sT0, 128 * 1152))
    A('s_mul_i32 s%d, s%d, 144' % (sT2, sCB))
    A('s_add_u32 s%d, s%d, s%d' % (sT1, sT1, sT2))
    A('s_add_u32 s40, s%d, s%d' % (sWO, sT1))
    A('s_addc_u32 s41, s%d, 0' % (sWO + 1))
    for blk in range(4):
        for i in range(8):
            if blk * 8 + i >= W_INFL:
                A('s_waitcnt vmcnt(%d)' % (W_INFL - 1))
            A('global_load_dwordx4 %s, v%d, s[40:41] offset:%d%s' % (vr(vR + 32 * blk + 4 * i), vO1 if i < 4 else vO2, (i & 3) * 1152, NT))
        if blk < 3:
            add64(40, 32 * 1152)
    A('s_mul_i32 s%d, s%d, %d' % (sT1, sT0, 16 * P2_SLOT))
    A('s_add_u32 s%d, s%d, %d' % (sT1, sT1, P2_OFF))
    A('s_add_u32 s42, s%d, s%d' % (sWS, sT1))
    A('s_addc_u32 s43, s%d, 0' % (sWS + 1))
    p3_slot()
    vG1, vG2, vM1, vM2 = 14, 15, 16, 17
    A('v_mul_u32_u24 v%d, %d, v%d' % (vM1, P2_SLOT, vHalf))
    A('v_lshl_add_u32 v%d, v%d, 4, v%d' % (vG1, vCi, vM1))
    A('v_add_u32 v%d, %d, v%d' % (vG2, 4 * 2 * P2_SLOT, vG1))
    A('v_add_u32 v%d, 512, v%d' % (vM1, vM1))
    A('v_add_u32 v%d, %d, v%d' % (vM2, 4 * 2 * P2_SLOT, vM1))
    tb = [vTB, vR, vR + 32, vR + 64]
    for blk in range(4):
        A('s_waitcnt vmcnt(%d)' % (24 - 8 * blk))
        transpose8(vR + 32 * blk, tb[blk])
    stamp(4)
    A.c('q received <=> all 16 workgroups of the group have reset their P2 slots')
    A('s_setprio 3')
    lds_wait_flag(L_FL + 0, vZ, vT)
    vOo = 224
    vMl = 64
    A('s_mov_b32 s%d, %d' % (sSPIN, SPIN))
    A.label('L_opoll')
    for i in range(8):
        A('global_load_dwordx4 %s, v%d, s[42:43] offset:%d sc1' % (vr(vOo + 4 * i), vG1 if i < 4 else vG2, (i & 3) * 2 * P2_SLOT))
        A('global_load_dwordx2 v[%d:%d], v%d, s[42:43] offset:%d sc1' % (vMl + 2 * i, vMl + 2 * i + 1, vM1 if i < 4 else vM2, (i & 3) * 2 * P2_SLOT))
    A('s_waitcnt vmcnt(0)')
    A('v_max3_u32 v%d, v%d, v%d, v%d' % (vT, vOo, vOo + 1, vOo + 2))
    for k in range(3, 31, 2):
        A('v_max3_u32 v%d, v%d, v%d, v%d' % (vT, vT, vOo + k, vOo + k + 1))
    A('v_max_u32 v%d, v%d, v%d' % (vT, vT, vOo + 31))
    for k in range(0, 16, 2):
        A('v_max3_u32 v%d, v%d, v%d, v%d' % (vT, vT, vMl + k, vMl + k + 1))
    A('v_cmp_eq_u32 vcc, -1, v%d' % vT)
    A('s_cbranch_vccz L_opoll_done')
    A('s_sub_u32 s%d, s%d, 1' % (sSPIN, sSPIN))
    A('s_cmp_lg_u32 s%d, 0' % sSPIN)
    A('s_cbranch_scc1 L_opoll')
    A.label('L_opoll_done')
    stamp(5)
    vM, vL = 10, 11
    A('v_max3_f32 v%d, v%d, v%d, v%d' % (vM, vMl, vMl + 2, vMl + 4))
    A('v_max3_f32 v%d, v%d, v%d, v%d' % (vM, vM, vMl + 6, vMl + 8))
    A('v_max3_f32 v%d, v%d, v%d, v%d' % (vM, vM, vMl + 10, vMl + 12))
    A('v_max_f32 v%d, v%d, v%d' % (vM, vM, vMl + 14))
    xhalf('max', vM, vT)
    for i in range(8):
        A('v_sub_f32 v%d, v%d, v%d' % (vMl + 2 * i, vMl + 2 * i, vM))
        A('v_mul_f32 v%d, s%d, v%d' % (vMl + 2 * i, sLOG2E, vMl + 2 * i))
        A('v_exp_f32 v%d, v%d' % (vMl + 2 * i, vMl + 2 * i))
    A.nop(1)
    A('v_mul_f32 v%d, v%d, v%d' % (vL, vMl, vMl + 1))
    for i in range(1, 8):
        A('v_fmac_f32 v%d, v%d, v%d' % (vL, vMl + 2 * i, vMl + 2 * i + 1))
    vO = 80
    for e in range(4):
        A('v_mul_f32 v%d, v%d, v%d' % (vO + e, vMl, vOo + e))
        for i in range(1, 8):
            A('v_fmac_f32 v%d, v%d, v%d' % (vO + e, vMl + 2 * i, vOo + 4 * i + e))
    xhalf('add', vL, vT)
    for e in range(4):
        xhalf('add', vO + e, vT)
    A('v_rcp_f32 v%d, v%d' % (vL, vL))
    A.nop(1)
    for e in range(4):
        A('v_mul_f32 v%d, v%d, v%d' % (vO + e, vO + e, vL))
    A('v_cvt_pk_bf16_f32 v%d, v%d, v%d' % (vO, vO, vO + 1))
    A('v_cvt_pk_bf16_f32 v%d, v%d, v%d' % (vO + 1, vO + 2, vO + 3))
    A('v_lshlrev_b32 v%d, 3, v%d' % (vT, vCi))
    A('ds_write_b64 v%d, v[%d:%d] offset:%d' % (vT, vO, vO + 1, L_OB))
    A('v_lshlrev_b32 v%d, 4, v%d' % (vT, vG))
    A('s_waitcnt lgkmcnt(0)')
    vAo = 64
    for blk in range(4):
        A('ds_read_b128 %s, v%d offset:%d' % (vr(vAo + 4 * blk), vT, L_OB + 64 * blk))
    A('s_waitcnt lgkmcnt(0)')
    for blk in range(4):
        for j in range(8):
            A('v_mfma_f32_16x16x32_bf16 %s, %s, %s, %s' % (vr(vAcc + 4 * j), vr(vAo + 4 * blk), vr(tb[blk] + 4 * j),
                                                            '0' if blk == 0 else vr(vAcc + 4 * j)))
    A.nop(10)
    for j in range(8):
        A('v_mov_b32 v%d, v%d' % (vMl + j, vAcc + 4 * j))
    A('v_lshlrev_b32 v%d, 5, v%d' % (vT, vC))
    A('s_mov_b64 exec, 0x1ff')
    A('global_store_dwordx4 v%d, %s, s[48:49] sc1' % (vT, vr(vMl)))
    A('global_store_dwordx4 v%d, %s, s[48:49] offset:16 sc1' % (vT, vr(vMl + 4)))
    A('s_branch L_end')

    A.label('L_x3')
    A.c('x3: w_down tile (144 rows x 72 cols)')
    A('s_setprio 0')
    vR = 96
    vTB = 64
    vAcc = 32
    vO3, vO4 = 14, 15
    A('v_min_u32 v%d, 8, v%d' % (vC8, vC))
    A('v_mul_u32_u24 v%d, %d, v%d' % (vO1, 8 * 1152, vG))
    A('v_lshl_add_u32 v%d, v%d, 4, v%d' % (vO1, vC8, vO1))
    A('v_add_u32 v%d, %d, v%d' % (vO2, 4 * 1152, vO1))
    A('v_and_b32 v%d, 1, v%d' % (vO3, vG))
    A('v_mul_u32_u24 v%d, %d, v%d' % (vO3, 8 * 1152, vO3))
    A('v_lshl_add_u32 v%d, v%d, 4, v%d' % (vO3, vC8, vO3))
    A('v_add_u32 v%d, %d, v%d' % (vO4, 4 * 1152, vO3))
    A('s_lshl_b32 s%d, s%d, 1' % (sT0, sA))
    A('s_add_u32 s%d, s%d, s%d' % (sT0, sT0, sHH))
    A('s_mul_i32 s%d, s%d, %d' % (sT1, sT0, 144 * 1152))
    A('s_mul_i32 s%d, s%d, 144' % (sT2, sCB))
    A('s_add_u32 s%d, s%d, s%d' % (sT1, sT1, sT2))
    A('s_add_u32 s40, s%d, s%d' % (sWD, sT1))
    A('s_addc_u32 s41, s%d, 0' % (sWD + 1))
    for blk in range(5):
        o1, o2 = (vO1, vO2) if blk < 4 else (vO3, vO4)
        for i in range(8):
            if blk * 8 + i >= W_INFL:
                A('s_waitcnt vmcnt(%d)' % (W_INFL - 1))
            A('global_load_dwordx4 %s, v%d, s[40:41] offset:%d%s' % (vr(vR + 32 * blk + 4 * i), o1 if i < 4 else o2, (i & 3) * 1152, NT))
        if blk < 4:
            add64(40, 32 * 1152)
    p3_slot()
    lds_wait_flag(L_FL + 4, vZ, vT)
    stamp(4)
    A('v_lshlrev_b32 v%d, 4, v%d' % (vT, vG))
    ah = [16, 20, 24, 28, 4 * 0 + 0]
    ah[4] = 0
    A('v_mov_b32 v%d, v%d' % (vO2, vC))
    vCc = vO2
    for blk in range(5):
        A('ds_read_b128 %s, v%d offset:%d' % (vr(ah[blk]), vT, L_H + 64 * blk))
    A('s_waitcnt lgkmcnt(0)')
    for blk in range(5):
        A('s_waitcnt vmcnt(%d)' % (32 - 8 * blk))
        transpose8(vR + 32 * blk, vTB)
        A.nop(2)
        for j in range(8):
            A('v_mfma_f32_16x16x32_bf16 %s, %s, %s, %s' % (vr(vAcc + 4 * j), vr(ah[blk]), vr(vTB + 4 * j),
                                                            '0' if blk == 0 else vr(vAcc + 4 * j)))
    A.nop(10)
    for j in range(8):
        A('v_mov_b32 v%d, v%d' % (vTB + j, vAcc + 4 * j))
    A('v_lshlrev_b32 v%d, 5, v%d' % (vT, vCc))
    A('s_mov_b64 exec, 0x1ff')
    A('global_store_dwordx4 v%d, %s, s[48:49] offset:288 sc1' % (vT, vr(vTB)))
    A('global_store_dwordx4 v%d, %s, s[48:49] offset:304 sc1' % (vT, vr(vTB + 4)))

    A.label('L_end')
    if STAMPS:
        A('s_cmp_ge_u32 s2, 256')
        A('s_cbranch_scc1 L_end2')
        stamp(15)
        A('s_mov_b64 exec, 1')
        A('s_lshl_b32 s60, s2, 3')
        A('s_add_u32 s60, s60, s%d' % sWAVE)
        A('s_lshl_b32 s60, s60, 6')
        A('s_add_u32 s60, s60, %d' % ST_OFF)
        A('s_add_u32 s60, s%d, s60' % sWS)
        A('s_addc_u32 s61, s%d, 0' % (sWS + 1))
        A('v_mov_b32 v8, 0')
        for i in range(16):
            A('v_mov_b32 v9, s%d' % (64 + i))
            A('global_store_dword v8, v9, s[60:61] offset:%d' % (4 * i))
        A.label('L_end2')
    A('s_endpgm')
    A.l.append('.section .rodata,"a"')
    A.l.append('.p2align 6')
    A.l.append('.amdhsa_kernel %s_kernel' % NAME)
    A.l.append('  .amdhsa_next_free_vgpr 256')
    A.l.append('  .amdhsa_next_free_sgpr 96')
    A.l.append('  .amdhsa_accum_offset 256')
    A.l.append('  .amdhsa_group_segment_fixed_size 0')
    A.l.append('  .amdhsa_kernarg_size 96')
    A.l.append('  .amdhsa_user_sgpr_count 2')
    A.l.append('  .amdhsa_user_sgpr_kernarg_segment_ptr 1')
    A.l.append('  .amdhsa_system_sgpr_workgroup_id_x 1')
    A.l.append('.end_amdhsa_kernel')


gen()
out = sys.argv[1] if len(sys.argv) > 1 else 'cdna_kernels/%s.s' % NAME
open(out, 'w').write('\n'.join(A.l) + '\n')
print('wrote', out, len(A.l), 'lines')
```

```python
import sys

NAME = 'parallel_sum__gqa_block_cached__swiglu_ffn__decode'
HDR = open('cdna_kernels/%s.s.ref' % NAME).read().split('; Override launch')[0]

NT = ' nt'
SPIN = 400000
import os
KV_INFL = int(os.environ.get('KV_INFL', '8'))
W_INFL = int(os.environ.get('W_INFL', '40'))
KV_PRE = int(os.environ.get('KV_PRE', '4'))

L_FL = 0
L_Q = 256
L_H = 768
L_OB = 1152
L_ML = 1408
L_OC = 2048
L_K = 8192
LDS_BYTES = L_K + 4 * 32768

P1_OFF = 0
P2_OFF = 1 << 20
P3_OFF = 2 << 20
P2_SLOT = 640
P3_SLOT = 576
IB_OFF = 3 << 20

sX, sK, sV, sWQ, sWO, sBX, sWG, sWU, sWD, sOUT, sDBG, sWS = [8 + 2 * i for i in range(12)]
sA, sB, sWAVE, sHH, sCB = 32, 33, 34, 35, 36
sSELLO, sSELHI, sMASKHI, sLOG2E, sSPIN, sONES = 37, 38, 39, 44, 45, 46
sT0, sT1, sT2, sT3 = 52, 53, 54, 55
sT4, sT5, sT6, sT7 = 56, 57, 58, 59


STAMPS = bool(int(__import__('os').environ.get('STAMPS', '0')))
ST_OFF = 8 << 20

class Asm:
    def __init__(self):
        self.l = []
        self.n = 0

    def __call__(self, s):
        self.l.append('    ' + s)

    def label(self, s):
        self.l.append(s + ':')

    def c(self, s):
        self.l.append('    ; ' + s)

    def newlabel(self, p):
        self.n += 1
        return 'L_%s_%d' % (p, self.n)

    def nop(self, n):
        while n > 0:
            k = min(n, 16)
            self('s_nop %d' % (k - 1))
            n -= k


A = Asm()


def stamp(i):
    if not STAMPS:
        return
    A('s_memrealtime s[62:63]')
    A('s_waitcnt lgkmcnt(0)')
    A('s_mov_b32 s%d, s62' % (64 + i))


def sp(r):
    return 's[%d:%d]' % (r, r + 1)


def vr(r, n=4):
    return 'v[%d:%d]' % (r, r + n - 1)


def allreduce(op, v, t):
    for d in ['quad_perm:[1,0,3,2]', 'quad_perm:[2,3,0,1]', 'row_half_mirror', 'row_mirror']:
        A.nop(2)
        A('v_%s_f32_dpp v%d, v%d, v%d %s row_mask:0xf bank_mask:0xf' % (op, v, v, v, d))
    xrow(op, v, t)


def xrow(op, v, t):
    for sw in ['v_permlane16_swap_b32', 'v_permlane32_swap_b32']:
        A('v_mov_b32 v%d, v%d' % (t, v))
        A.nop(2)
        A('%s v%d, v%d' % (sw, v, t))
        A('v_%s_f32 v%d, v%d, v%d' % (op, v, v, t))


def xhalf(op, v, t):
    A('v_mov_b32 v%d, v%d' % (t, v))
    A.nop(2)
    A('v_permlane32_swap_b32 v%d, v%d' % (v, t))
    A('v_%s_f32 v%d, v%d, v%d' % (op, v, v, t))


def rne(v):
    A('v_cvt_pk_bf16_f32 v%d, v%d, v%d' % (v, v, v))
    A('v_lshlrev_b32 v%d, 16, v%d' % (v, v))


def rne2(a, b, t):
    A('v_cvt_pk_bf16_f32 v%d, v%d, v%d' % (t, a, b))
    A('v_lshlrev_b32 v%d, 16, v%d' % (a, t))
    A('v_and_b32 v%d, s%d, v%d' % (b, sMASKHI, t))


def add64(s, imm):
    A('s_add_u32 s%d, s%d, %d' % (s, s, imm))
    A('s_addc_u32 s%d, s%d, 0' % (s + 1, s + 1))


def lds_wait_flag(off, vz, vt):
    lp = A.newlabel('lw')
    dn = A.newlabel('lwd')
    A('s_mov_b32 s%d, %d' % (sSPIN, SPIN * 8))
    A.label(lp)
    A('ds_read_b32 v%d, v%d offset:%d' % (vt, vz, off))
    A('s_waitcnt lgkmcnt(0)')
    A('v_readfirstlane_b32 s%d, v%d' % (sT0, vt))
    A('s_cmp_lg_u32 s%d, 0' % sT0)
    A('s_cbranch_scc1 %s' % dn)
    A('s_sleep 1')
    A('s_sub_u32 s%d, s%d, 1' % (sSPIN, sSPIN))
    A('s_cmp_lg_u32 s%d, 0' % sSPIN)
    A('s_cbranch_scc1 %s' % lp)
    A.label(dn)


def lds_wait_eq(off, val, vz, vt):
    lp = A.newlabel('lw')
    dn = A.newlabel('lwd')
    A('s_mov_b32 s%d, %d' % (sSPIN, SPIN * 8))
    A.label(lp)
    A('ds_read_b32 v%d, v%d offset:%d' % (vt, vz, off))
    A('s_waitcnt lgkmcnt(0)')
    A('v_readfirstlane_b32 s%d, v%d' % (sT0, vt))
    A('s_cmp_eq_u32 s%d, %d' % (sT0, val))
    A('s_cbranch_scc1 %s' % dn)
    A('s_sleep 2')
    A('s_sub_u32 s%d, s%d, 1' % (sSPIN, sSPIN))
    A('s_cmp_lg_u32 s%d, 0' % sSPIN)
    A('s_cbranch_scc1 %s' % lp)
    A.label(dn)


def transpose8(src, dst):
    for j in range(8):
        for q in range(4):
            A('v_perm_b32 v%d, v%d, v%d, s%d' % (dst + 4 * j + q, src + 4 * (2 * q + 1) + (j >> 1),
                                                  src + 4 * (2 * q) + (j >> 1), sSELHI if j & 1 else sSELLO))


def gen():
    A.l.append(HDR.rstrip('\n'))
    A.l.append('; @launch grid=(256,1,1) block=(512,1,1) lds=%d' % LDS_BYTES)
    A.l.append('.amdgcn_target "amdgcn-amd-amdhsa--gfx950"')
    A.l.append('.text')
    A.l.append('.globl %s_kernel' % NAME)
    A.l.append('.p2align 8')
    A.l.append('.type %s_kernel,@function' % NAME)
    A.label('%s_kernel' % NAME)
    A('s_cmp_ge_u32 s2, 256')
    A('s_cbranch_scc1 L_end')
    A('s_load_dwordx16 s[8:23], s[0:1], 0')
    A('s_load_dwordx8 s[24:31], s[0:1], 64')
    vLane, vC, vG, vZ = 1, 3, 4, 7
    if STAMPS:
        for i in range(16):
            A('s_mov_b32 s%d, 0' % (64 + i))
        stamp(0)
    A('v_and_b32 v1, 63, v0')
    A('v_lshrrev_b32 v2, 6, v0')
    A('v_and_b32 v%d, 15, v1' % vC)
    A('v_lshrrev_b32 v%d, 4, v1' % vG)
    A('v_mov_b32 v%d, 0' % vZ)
    A('v_readfirstlane_b32 s%d, v2' % sWAVE)
    A('s_and_b32 s%d, s2, 7' % sA)
    A('s_lshl_b32 s%d, s%d, 1' % (sA, sA))
    A('s_bfe_u32 s3, s2, 0x10003')
    A('s_or_b32 s%d, s%d, s3' % (sA, sA))
    A('s_lshr_b32 s%d, s2, 4' % sB)
    A('s_lshr_b32 s%d, s%d, 3' % (sHH, sB))
    A('s_and_b32 s%d, s%d, 7' % (sCB, sB))
    A('s_mov_b32 s%d, 0x05040100' % sSELLO)
    A('s_mov_b32 s%d, 0x07060302' % sSELHI)
    A('s_mov_b32 s%d, 0xffff0000' % sMASKHI)
    A('s_mov_b32 s%d, 0x3fb8aa3b' % sLOG2E)
    A('s_mov_b32 s%d, 0x01010101' % sONES)
    A('s_cmp_lg_u32 s%d, 0' % sWAVE)
    A('s_cbranch_scc1 L_noinit')
    A('v_mov_b32 v8, 0')
    A('v_mov_b32 v9, 0')
    A('v_mov_b32 v10, 0')
    A('v_mov_b32 v11, 0')
    A('v_lshlrev_b32 v12, 4, v%d' % vLane)
    A('ds_write_b128 v12, v[8:11]')
    A('ds_write_b128 v12, v[8:11] offset:1024')
    A.label('L_noinit')
    A('s_waitcnt lgkmcnt(0)')
    A('s_barrier')
    A('s_cmp_ge_u32 s%d, 4' % sWAVE)
    A('s_cbranch_scc1 L_aux')

    A.c('---------------- KV waves')
    vKoff, vVoff, vT = 5, 6, 8
    vQ, vS, vKt, vAcc, vV = 16, 32, 64, 96, 128
    vP = 16
    A('v_lshlrev_b32 v%d, 8, v%d' % (vKoff, vC))
    A('v_lshl_add_u32 v%d, v%d, 4, v%d' % (vKoff, vG, vKoff))
    A('v_lshlrev_b32 v%d, 10, v%d' % (vVoff, vG))
    A('v_lshl_add_u32 v%d, v%d, 4, v%d' % (vVoff, vC, vVoff))
    A('s_lshl_b32 s%d, s%d, 21' % (sT4, sA))
    A('s_lshl_b32 s%d, s%d, 17' % (sT5, sB))
    A('s_add_u32 s%d, s%d, s%d' % (sT4, sT4, sT5))
    A('s_lshl_b32 s%d, s%d, 15' % (sT5, sWAVE))
    A('s_add_u32 s%d, s%d, s%d' % (sT4, sT4, sT5))
    A('s_add_u32 s%d, s%d, %d' % (sT6, sT5, L_K))
    A('s_add_u32 s40, s%d, s%d' % (sK, sT4))
    A('s_addc_u32 s41, s%d, 0' % (sK + 1))
    A('s_add_u32 s42, s%d, s%d' % (sV, sT4))
    A('s_addc_u32 s43, s%d, 0' % (sV + 1))
    nld = 0
    sQKD, sRET = 60, 94
    A('s_mov_b32 s%d, 0' % sQKD)
    for t in range(8):
        for j in range(4):
            if nld == KV_PRE:
                lds_wait_eq(L_FL + 24, 4, vZ, vT)
            A('s_add_u32 m0, s%d, %d' % (sT6, (4 * t + j) * 1024 - 64 * j))
            if nld >= KV_INFL:
                A('s_waitcnt vmcnt(%d)' % (KV_INFL - 1))
            else:
                A('s_nop 0')
            A('global_load_lds_dwordx4 v%d, s[40:41] offset:%d%s' % (vKoff, 64 * j, NT))
            nld += 1
        add64(40, 4096)
    nv = 0
    for u in range(4):
        for hf in range(2):
            for i in range(4):
                if nld >= KV_INFL:
                    A('s_waitcnt vmcnt(%d)' % (KV_INFL - 1))
                A('global_load_dwordx4 %s, v%d, s[42:43] offset:%d%s' % (vr(vV + (u * 8 + hf * 4 + i) * 4), vVoff, i * 256, NT))
                nld += 1
                nv += 1
            add64(42, 4096)
            if nv >= KV_INFL and nv < 32:
                sk = A.newlabel('noqk')
                A('s_cmp_lg_u32 s%d, 0' % sQKD)
                A('s_cbranch_scc1 %s' % sk)
                A('ds_read_b32 v%d, v%d offset:%d' % (vT, vZ, L_FL + 0))
                A('s_waitcnt lgkmcnt(0)')
                A('v_readfirstlane_b32 s%d, v%d' % (sT0, vT))
                A('s_cmp_eq_u32 s%d, 0' % sT0)
                A('s_cbranch_scc1 %s' % sk)
                A('s_call_b64 s[%d:%d], L_qk' % (sRET, sRET + 1))
                A.label(sk)
    stamp(1)
    A('v_mov_b32 v%d, 1' % vT)
    A('s_mov_b64 exec, 1')
    A('ds_add_u32 v%d, v%d offset:%d' % (vZ, vT, L_FL + 20))
    A('s_mov_b64 exec, -1')
    A('s_cmp_lg_u32 s%d, 0' % sQKD)
    A('s_cbranch_scc1 L_qk_done')
    A.c('wait for q')
    lds_wait_flag(L_FL + 0, vZ, vT)
    A('s_call_b64 s[%d:%d], L_qk' % (sRET, sRET + 1))
    A('s_branch L_qk_done')
    A.c('---- QK^T + softmax subroutine (all K loads of this wave have landed when it is called)')
    A.label('L_qk')
    stamp(2)
    A('s_mov_b32 s%d, 1' % sQKD)
    A('v_and_b32 v%d, 1, v%d' % (vT, vLane))
    A('v_lshlrev_b32 v%d, 8, v%d' % (vT, vT))
    A('v_lshl_add_u32 v%d, v%d, 4, v%d' % (vT, vG, vT))
    for j in range(4):
        A('ds_read_b128 %s, v%d offset:%d' % (vr(vQ + 4 * j), vT, L_Q + 64 * j))
    A('v_lshlrev_b32 v%d, 4, v%d' % (vT + 1, vLane))
    A('v_add_u32 v%d, s%d, v%d' % (vT + 1, sT6, vT + 1))
    for bt in range(4):
        for tt in range(2):
            for j in range(4):
                A('ds_read_b128 %s, v%d offset:%d' % (vr(vKt + (tt * 4 + j) * 4), vT + 1, ((2 * bt + tt) * 4 + j) * 1024))
        A('s_waitcnt lgkmcnt(0)')
        for tt in range(2):
            t = 2 * bt + tt
            for j in range(4):
                A('v_mfma_f32_16x16x32_bf16 %s, %s, %s, %s' % (vr(vS + 4 * t), vr(vKt + (tt * 4 + j) * 4), vr(vQ + 4 * j),
                                                                '0' if j == 0 else vr(vS + 4 * t)))
    A.nop(10)
    A.c('round scores like the reference: bf16(bf16(raw) * scale)')
    A('s_mov_b32 s%d, 0x3db504f3' % sT0)
    for k in range(0, 32, 2):
        rne2(vS + k, vS + k + 1, vT)
        A('v_mul_f32 v%d, s%d, v%d' % (vS + k, sT0, vS + k))
        A('v_mul_f32 v%d, s%d, v%d' % (vS + k + 1, sT0, vS + k + 1))
        rne2(vS + k, vS + k + 1, vT)
    vM, vL = 10, 11
    A('v_max3_f32 v%d, v%d, v%d, v%d' % (vM, vS, vS + 1, vS + 2))
    for k in range(3, 31, 2):
        A('v_max3_f32 v%d, v%d, v%d, v%d' % (vM, vM, vS + k, vS + k + 1))
    A('v_max_f32 v%d, v%d, v%d' % (vM, vM, vS + 31))
    xrow('max', vM, vT)
    for k in range(32):
        A('v_sub_f32 v%d, v%d, v%d' % (vS + k, vS + k, vM))
        A('v_mul_f32 v%d, s%d, v%d' % (vS + k, sLOG2E, vS + k))
        A('v_exp_f32 v%d, v%d' % (vS + k, vS + k))
    A.nop(1)
    A('v_add_f32 v%d, v%d, v%d' % (vL, vS, vS + 1))
    for k in range(2, 32):
        A('v_add_f32 v%d, v%d, v%d' % (vL, vL, vS + k))
    xrow('add', vL, vT)
    for k in range(16):
        A('v_cvt_pk_bf16_f32 v%d, v%d, v%d' % (vP + k, vS + 2 * k, vS + 2 * k + 1))
    stamp(3)
    A('s_setpc_b64 s[%d:%d]' % (sRET, sRET + 1))
    A.label('L_qk_done')
    stamp(4)
    A.c('PV')
    for u in range(4):
        A('s_waitcnt vmcnt(%d)' % (24 - 8 * u))
        transpose8(vV + 32 * u, vKt)
        A.nop(2)
        for j in range(8):
            A('v_mfma_f32_16x16x32_bf16 %s, %s, %s, %s' % (vr(vAcc + 4 * j), vr(vP + 4 * u), vr(vKt + 4 * j),
                                                            '0' if u == 0 else vr(vAcc + 4 * j)))
    A.nop(10)
    stamp(5)
    A.c('write o partial of this wave to LDS')
    for hd in range(2):
        for j in range(8):
            A('v_mov_b32 v%d, v%d' % (vS + 8 * hd + j, vAcc + 4 * j + hd))
    A('s_lshl_b32 s%d, s%d, 10' % (sT0, sWAVE))
    A('v_lshlrev_b32 v%d, 5, v%d' % (vT, vC))
    A('v_add_u32 v%d, s%d, v%d' % (vT, sT0, vT))
    A('s_lshl_b32 s%d, s%d, 4' % (sT0, sWAVE))
    A('v_lshlrev_b32 v%d, 3, v%d' % (vT + 1, vLane))
    A('v_add_u32 v%d, s%d, v%d' % (vT + 1, sT0, vT + 1))
    A('s_mov_b64 exec, 0xffff')
    for hd in range(2):
        A('ds_write_b128 v%d, %s offset:%d' % (vT, vr(vS + 8 * hd), L_OC + 512 * hd))
        A('ds_write_b128 v%d, %s offset:%d' % (vT, vr(vS + 8 * hd + 4), L_OC + 512 * hd + 16))
    A('s_mov_b64 exec, 3')
    A('ds_write_b64 v%d, v[%d:%d] offset:%d' % (vT + 1, vM, vL, L_ML))
    A('s_mov_b64 exec, 1')
    A('v_mov_b32 v%d, 1' % vT)
    A('s_waitcnt lgkmcnt(0)')
    A('ds_add_rtn_u32 v%d, v%d, v%d offset:%d' % (vT, vZ, vT, L_FL + 12))
    A('s_waitcnt lgkmcnt(0)')
    A('v_readfirstlane_b32 s%d, v%d' % (sT0, vT))
    A('s_mov_b64 exec, -1')
    A('s_cmp_lg_u32 s%d, 3' % sT0)
    A('s_cbranch_scc1 L_end')
    A.c('last KV wave: combine the four partials and publish')
    vHd, vKk = 12, 13
    A('v_lshrrev_b32 v%d, 5, v%d' % (vHd, vLane))
    A('v_and_b32 v%d, 31, v%d' % (vKk, vLane))
    A('v_lshlrev_b32 v%d, 4, v%d' % (vT, vLane))
    A('v_lshlrev_b32 v%d, 3, v%d' % (vT + 1, vHd))
    for w in range(4):
        A('ds_read_b128 %s, v%d offset:%d' % (vr(vS + 4 * w), vT, L_OC + 1024 * w))
        A('ds_read_b64 v[%d:%d], v%d offset:%d' % (vS + 16 + 2 * w, vS + 17 + 2 * w, vT + 1, L_ML + 16 * w))
    A('s_waitcnt lgkmcnt(0)')
    m_ = [vS + 16 + 2 * w for w in range(4)]
    l_ = [vS + 17 + 2 * w for w in range(4)]
    A('v_max3_f32 v%d, v%d, v%d, v%d' % (vM, m_[0], m_[1], m_[2]))
    A('v_max_f32 v%d, v%d, v%d' % (vM, vM, m_[3]))
    for w in range(4):
        A('v_sub_f32 v%d, v%d, v%d' % (m_[w], m_[w], vM))
        A('v_mul_f32 v%d, s%d, v%d' % (m_[w], sLOG2E, m_[w]))
        A('v_exp_f32 v%d, v%d' % (m_[w], m_[w]))
    A.nop(1)
    A('v_mul_f32 v%d, v%d, v%d' % (vL, m_[0], l_[0]))
    for w in range(1, 4):
        A('v_fmac_f32 v%d, v%d, v%d' % (vL, m_[w], l_[w]))
    vO = vS + 24
    for e in range(4):
        A('v_mul_f32 v%d, v%d, v%d' % (vO + e, m_[0], vS + e))
        for w in range(1, 4):
            A('v_fmac_f32 v%d, v%d, v%d' % (vO + e, m_[w], vS + 4 * w + e))
    A('s_lshl_b32 s%d, s%d, 5' % (sT0, sA))
    A('s_add_u32 s%d, s%d, s%d' % (sT0, sT0, sB))
    A('s_mul_i32 s%d, s%d, %d' % (sT0, sT0, P2_SLOT))
    A('s_add_u32 s%d, s%d, %d' % (sT0, sT0, P2_OFF))
    A('s_add_u32 s40, s%d, s%d' % (sWS, sT0))
    A('s_addc_u32 s41, s%d, 0' % (sWS + 1))
    A('v_mul_u32_u24 v%d, %d, v%d' % (vT, 16 * P2_SLOT, vHd))
    A('v_lshl_add_u32 v%d, v%d, 4, v%d' % (vT + 1, vKk, vT))
    A('global_store_dwordx4 v%d, %s, s[40:41] sc1' % (vT + 1, vr(vO)))
    A('s_mov_b32 s%d, 1' % sT0)
    A('s_mov_b32 s%d, 1' % sT1)
    A('s_mov_b64 exec, s[%d:%d]' % (sT0, sT1))
    A('global_store_dwordx2 v%d, v[%d:%d], s[40:41] offset:512 sc1' % (vT, vM, vL))
    A('s_branch L_end')

    A.label('L_aux')
    A.c('---------------- aux waves: stage 1')
    A('s_setprio 3')
    sXW = 47
    A('s_sub_u32 s%d, s%d, 4' % (sXW, sWAVE))
    vHalf, vCi, vCh, vT = 5, 6, 19, 8
    vAdr, vStr = 14, 16
    vXs = 20
    vAc = 32
    vXr = 96
    vW = 128
    A('v_lshrrev_b32 v%d, 5, v%d' % (vHalf, vLane))
    A('v_and_b32 v%d, 31, v%d' % (vCi, vLane))
    A('v_min_u32 v%d, 25, v%d' % (vCh, vCi))
    A('s_mul_i32 s%d, s%d, 26' % (sT0, sXW))
    A('v_add_u32 v%d, s%d, v%d' % (vCh, sT0, vCh))
    A('s_mul_i32 s%d, s%d, 36' % (sT1, sB))
    A('v_add_u32 v%d, s%d, v%d' % (vT, sT1, vHalf))
    A('v_lshlrev_b32 v%d, 1, v%d' % (vT + 1, vLane))
    A('v_lshlrev_b32 v%d, 1, v%d' % (vT + 2, vT))
    A.c('reset own hand-off slots to the sentinel')
    vSn = 40
    for e in range(4):
        A('v_mov_b32 v%d, -1' % (vSn + e))
    A('s_lshl_b32 s%d, s%d, 4' % (sT0, sA))
    A('s_add_u32 s%d, s%d, s%d' % (sT0, sT0, sB))
    A('s_lshl_b32 s%d, s%d, 12' % (sT2, sT0))
    A('s_add_u32 s50, s%d, s%d' % (sWS, sT2))
    A('s_addc_u32 s51, s%d, 0' % (sWS + 1))
    A('s_mul_i32 s%d, s%d, 832' % (sT2, sXW))
    A('v_lshlrev_b32 v%d, 4, v%d' % (vT + 3, vLane))
    A('v_add_u32 v%d, s%d, v%d' % (vT + 4, sT2, vT + 3))
    A('s_mov_b32 exec_hi, 0xfffff')
    A('global_store_dwordx4 v%d, %s, s[50:51] sc1' % (vT + 4, vr(vSn)))
    A('s_mov_b64 exec, -1')
    A('s_cmp_lg_u32 s%d, 0' % sXW)
    A('s_cbranch_scc1 L_noreset')
    A('s_lshl_b32 s%d, s%d, 5' % (sT2, sA))
    A('s_add_u32 s%d, s%d, s%d' % (sT2, sT2, sB))
    A('s_mul_i32 s%d, s%d, %d' % (sT2, sT2, P2_SLOT))
    A('s_add_u32 s%d, s%d, %d' % (sT2, sT2, P2_OFF))
    A('s_add_u32 s40, s%d, s%d' % (sWS, sT2))
    A('s_addc_u32 s41, s%d, 0' % (sWS + 1))
    A('v_mul_u32_u24 v%d, %d, v%d' % (vT + 4, 16 * P2_SLOT, vHalf))
    A('v_lshl_add_u32 v%d, v%d, 4, v%d' % (vT + 4, vCi, vT + 4))
    A('global_store_dwordx4 v%d, %s, s[40:41] sc1' % (vT + 4, vr(vSn)))
    A('global_store_dwordx4 v%d, %s, s[40:41] offset:128 sc1' % (vT + 4, vr(vSn)))
    A('s_lshl_b32 s%d, s%d, 5' % (sT2, sCB))
    A('s_lshl_b32 s%d, s%d, 1' % (sT3, sA))
    A('s_add_u32 s%d, s%d, s%d' % (sT2, sT2, sT3))
    A('s_add_u32 s%d, s%d, s%d' % (sT2, sT2, sHH))
    A('s_mul_i32 s%d, s%d, %d' % (sT2, sT2, P3_SLOT))
    A('s_add_u32 s%d, s%d, %d' % (sT2, sT2, P3_OFF))
    A('s_add_u32 s40, s%d, s%d' % (sWS, sT2))
    A('s_addc_u32 s41, s%d, 0' % (sWS + 1))
    A('s_mov_b32 exec_hi, 15')
    A('global_store_dwordx4 v%d, %s, s[40:41] sc1' % (vT + 3, vr(vSn)))
    A('s_lshl_b32 s%d, s%d, 7' % (sT2, sT0))
    A('s_add_u32 s%d, s%d, %d' % (sT2, sT2, IB_OFF))
    A('s_add_u32 s40, s%d, s%d' % (sWS, sT2))
    A('s_addc_u32 s41, s%d, 0' % (sWS + 1))
    A('s_mov_b64 exec, 1')
    A('global_store_dword v%d, v%d, s[40:41] sc1' % (vZ, vSn))
    A('s_mov_b64 exec, -1')
    A.label('L_noreset')
    for k in range(9):
        A('global_load_ushort v%d, v%d, %s offset:%d' % (vXs + k, vT + 1, sp(sX), 128 * k))
    for i in range(18):
        A('global_load_ushort v%d, v%d, %s offset:%d' % (vXr + i, vT + 2, sp(sX), 4 * i))
    A('s_lshl_b32 s%d, s%d, 9' % (sT0, sA))
    A('s_add_u32 s40, s%d, s%d' % (sWQ, sT0))
    A('s_addc_u32 s41, s%d, 0' % (sWQ + 1))
    A('s_mul_i32 s%d, s%d, 576' % (sT0, sA))
    A('s_add_u32 s42, s%d, s%d' % (sWG, sT0))
    A('s_addc_u32 s43, s%d, 0' % (sWG + 1))
    A('s_sub_u32 s42, s42, 512')
    A('s_subb_u32 s43, s43, 0')
    A('s_add_u32 s48, s%d, s%d' % (sWU, sT0))
    A('s_addc_u32 s49, s%d, 0' % (sWU + 1))
    A('s_sub_u32 s48, s48, 1088')
    A('s_subb_u32 s49, s49, 0')
    A('v_mov_b32 v%d, s40' % vAdr)
    A('v_mov_b32 v%d, s41' % (vAdr + 1))
    A('v_mov_b32 v%d, 0x2000' % vStr)
    A('v_mov_b32 v%d, s42' % (vT + 3))
    A('v_mov_b32 v%d, s43' % (vT + 4))
    A('v_mov_b32 v%d, 0x2400' % (vT + 5))
    A('v_cmp_lt_u32 vcc, 31, v%d' % vCh)
    A.nop(2)
    A('v_cndmask_b32 v%d, v%d, v%d, vcc' % (vAdr, vAdr, vT + 3))
    A('v_cndmask_b32 v%d, v%d, v%d, vcc' % (vAdr + 1, vAdr + 1, vT + 4))
    A('v_cndmask_b32 v%d, v%d, v%d, vcc' % (vStr, vStr, vT + 5))
    A('v_mov_b32 v%d, s48' % (vT + 3))
    A('v_mov_b32 v%d, s49' % (vT + 4))
    A('v_cmp_lt_u32 vcc, 67, v%d' % vCh)
    A.nop(2)
    A('v_cndmask_b32 v%d, v%d, v%d, vcc' % (vAdr, vAdr, vT + 3))
    A('v_cndmask_b32 v%d, v%d, v%d, vcc' % (vAdr + 1, vAdr + 1, vT + 4))
    A('v_mul_lo_u32 v%d, v%d, v%d' % (vT + 3, vT, vStr))
    A('v_lshl_add_u32 v%d, v%d, 4, v%d' % (vT + 3, vCh, vT + 3))
    A('v_add_co_u32 v%d, vcc, v%d, v%d' % (vAdr, vAdr, vT + 3))
    A('v_addc_co_u32 v%d, vcc, 0, v%d, vcc' % (vAdr + 1, vAdr + 1))
    A('v_lshlrev_b32 v%d, 1, v%d' % (vStr, vStr))
    for i in range(18):
        A('global_load_dwordx4 %s, v[%d:%d], off%s' % (vr(vW + 4 * i), vAdr, vAdr + 1, NT))
        if i < 17:
            A('v_add_co_u32 v%d, vcc, v%d, v%d' % (vAdr, vAdr, vStr))
            A('v_addc_co_u32 v%d, vcc, 0, v%d, vcc' % (vAdr + 1, vAdr + 1))
    A.c('resets done -> arrive')
    vArr = 44
    A('s_mov_b64 exec, 1')
    A('v_mov_b32 v%d, 1' % vT)
    A('ds_add_u32 v%d, v%d offset:%d' % (vZ, vT, L_FL + 24))
    A('s_waitcnt vmcnt(45)')
    A('ds_add_u32 v%d, v%d offset:%d' % (vZ, vT, L_FL + 8))
    A('s_cmp_lg_u32 s%d, 0' % sXW)
    A('s_cbranch_scc1 L_noarr')
    A('s_mov_b32 s%d, %d' % (sSPIN, SPIN * 8))
    A.label('L_s1w')
    A('ds_read_b32 v%d, v%d offset:%d' % (vT + 1, vZ, L_FL + 8))
    A('s_waitcnt lgkmcnt(0)')
    A('v_readfirstlane_b32 s%d, v%d' % (sT0, vT + 1))
    A('s_cmp_eq_u32 s%d, 4' % sT0)
    A('s_cbranch_scc1 L_s1wd')
    A('s_sub_u32 s%d, s%d, 1' % (sSPIN, sSPIN))
    A('s_cmp_lg_u32 s%d, 0' % sSPIN)
    A('s_cbranch_scc1 L_s1w')
    A.label('L_s1wd')
    A('s_lshl_b32 s%d, s%d, 2' % (sT1, sA))
    A('v_mov_b32 v%d, s%d' % (vT + 1, sT1))
    A('global_atomic_add v%d, v%d, v%d, %s offset:128 sc0 sc1' % (vArr, vT + 1, vT, sp(sDBG)))
    A.label('L_noarr')
    A('s_mov_b64 exec, -1')
    stamp(1)
    A.c('layernorm statistics')
    A('s_waitcnt vmcnt(36)')
    vSum, vMean, vRs, vSd = 29, 30, 17, 18
    for k in range(9):
        A('v_lshlrev_b32 v%d, 16, v%d' % (vXs + k, vXs + k))
    A('v_add_f32 v%d, v%d, v%d' % (vSum, vXs, vXs + 1))
    for k in range(2, 9):
        A('v_add_f32 v%d, v%d, v%d' % (vSum, vSum, vXs + k))
    allreduce('add', vSum, vT)
    A('v_mul_f32 v%d, 0x3ae38e39, v%d' % (vMean, vSum))
    for k in range(9):
        A('v_sub_f32 v%d, v%d, v%d' % (vXs + k, vXs + k, vMean))
    A('v_mul_f32 v%d, v%d, v%d' % (vSum, vXs, vXs))
    for k in range(1, 9):
        A('v_fmac_f32 v%d, v%d, v%d' % (vSum, vXs + k, vXs + k))
    allreduce('add', vSum, vT)
    A('v_mul_f32 v%d, 0x3ae38e39, v%d' % (vSum, vSum))
    rne(vSum)
    A('v_add_f32 v%d, 0x3727c5ac, v%d' % (vSum, vSum))
    rne(vSum)
    A('v_sqrt_f32 v%d, v%d' % (vSd, vSum))
    A.nop(1)
    rne(vSd)
    A('v_rcp_f32 v%d, v%d' % (vRs, vSd))
    rne(vMean)
    A('s_waitcnt vmcnt(18)')
    for i in range(18):
        r = vXr + i
        A('v_lshlrev_b32 v%d, 16, v%d' % (r, r))
        A('v_sub_f32 v%d, v%d, v%d' % (r, r, vMean))
        rne(r)
        A('v_mul_f32 v%d, v%d, v%d' % (vT, r, vRs))
        A('v_fma_f32 v%d, -v%d, v%d, v%d' % (vT + 1, vT, vSd, r))
        A('v_fma_f32 v%d, v%d, v%d, v%d' % (r, vT + 1, vRs, vT))
        rne(r)
    for e in range(8):
        A('v_mov_b32 v%d, 0' % (vAc + e))
    for i in range(18):
        A('s_waitcnt vmcnt(%d)' % (17 - i))
        for r in range(4):
            A('v_lshlrev_b32 v%d, 16, v%d' % (vT, vW + 4 * i + r))
            A('v_and_b32 v%d, s%d, v%d' % (vT + 1, sMASKHI, vW + 4 * i + r))
            A('v_fmac_f32 v%d, v%d, v%d' % (vAc + 2 * r, vXr + i, vT))
            A('v_fmac_f32 v%d, v%d, v%d' % (vAc + 2 * r + 1, vXr + i, vT + 1))
    for e in range(8):
        xhalf('add', vAc + e, vT)
    stamp(2)
    A.c('publish stage-1 partials')
    A('v_lshlrev_b32 v%d, 5, v%d' % (vT, vCh))
    A('s_mov_b64 exec, 0x3ffffff')
    A('global_store_dwordx4 v%d, %s, s[50:51] sc1' % (vT, vr(vAc)))
    A('global_store_dwordx4 v%d, %s, s[50:51] offset:16 sc1' % (vT, vr(vAc + 4)))
    A('s_mov_b64 exec, -1')
    A('s_cmp_eq_u32 s%d, 2' % sXW)
    A('s_cbranch_scc1 L_x2')
    A('s_cmp_eq_u32 s%d, 3' % sXW)
    A('s_cbranch_scc1 L_x3')
    A('s_lshl_b32 s%d, s%d, 16' % (sT0, sA))
    A('s_add_u32 s40, s%d, s%d' % (sWS, sT0))
    A('s_addc_u32 s41, s%d, 0' % (sWS + 1))
    A('s_cmp_eq_u32 s%d, 1' % sXW)
    A('s_cbranch_scc1 L_x1')

    A('s_lshl_b32 s%d, s%d, 11' % (sT0, sA))
    A('s_add_u32 s%d, s%d, %d' % (sT0, sT0, IB_OFF))
    A('s_add_u32 s42, s%d, s%d' % (sWS, sT0))
    A('s_addc_u32 s43, s%d, 0' % (sWS + 1))
    A('s_waitcnt vmcnt(2)')
    A('v_readfirstlane_b32 s%d, v%d' % (sT1, vArr))
    stamp(3)
    A('s_cmp_lg_u32 s%d, 15' % sT1)
    A('s_cbranch_scc1 L_notlast')
    A.c('last arriver of the group: release the group')
    A('v_mov_b32 v%d, 1' % vT)
    A('v_lshlrev_b32 v%d, 7, v%d' % (vT + 1, vLane))
    A('s_mov_b64 exec, 0xffff')
    A('global_store_dword v%d, v%d, s[42:43] sc1' % (vT + 1, vT))
    A('s_mov_b64 exec, 1')
    A('v_mov_b32 v%d, 64' % (vT + 1))
    A('global_atomic_add v%d, v%d, %s offset:128 sc1' % (vT + 1, vT, sp(sDBG)))
    A('s_mov_b64 exec, -1')
    A.label('L_notlast')
    A('s_lshl_b32 s%d, s%d, 7' % (sT0, sB))
    A('v_mov_b32 v%d, s%d' % (vT, sT0))
    A('s_mov_b32 s%d, %d' % (sSPIN, SPIN))
    A.label('L_gopoll')
    A('global_load_dword v%d, v%d, s[42:43] sc1' % (vT + 1, vT))
    A('s_waitcnt vmcnt(0)')
    A('v_cmp_ne_u32 vcc, 1, v%d' % (vT + 1))
    A('s_cbranch_vccz L_gopoll_done')
    A('s_sleep 2')
    A('s_sub_u32 s%d, s%d, 1' % (sSPIN, sSPIN))
    A('s_cmp_lg_u32 s%d, 0' % sSPIN)
    A('s_cbranch_scc1 L_gopoll')
    A.label('L_gopoll_done')
    A('ds_write_b32 v%d, v%d offset:%d' % (vZ, vT + 1, L_FL + 16))
    stamp(4)
    A.c('x0: gather q')
    A('v_lshlrev_b32 v%d, 4, v%d' % (vT, vLane))
    A('s_mov_b32 s%d, %d' % (sSPIN, SPIN))
    A.label('L_qpoll')
    A('s_mov_b32 s48, s40')
    A('s_mov_b32 s49, s41')
    for bb in range(16):
        A('global_load_dwordx4 %s, v%d, s[48:49] sc1' % (vr(vW + 4 * bb), vT))
        if bb < 15:
            add64(48, 4096)
    A('s_waitcnt vmcnt(0)')
    A('v_max3_u32 v%d, v%d, v%d, v%d' % (vT + 1, vW, vW + 1, vW + 2))
    for k in range(3, 63, 2):
        A('v_max3_u32 v%d, v%d, v%d, v%d' % (vT + 1, vT + 1, vW + k, vW + k + 1))
    A('v_max_u32 v%d, v%d, v%d' % (vT + 1, vT + 1, vW + 63))
    A('v_cmp_eq_u32 vcc, -1, v%d' % (vT + 1))
    A('s_cbranch_vccz L_qpoll_done')
    A('s_sleep 2')
    A('s_sub_u32 s%d, s%d, 1' % (sSPIN, sSPIN))
    A('s_cmp_lg_u32 s%d, 0' % sSPIN)
    A('s_cbranch_scc1 L_qpoll')
    A.label('L_qpoll_done')
    for bb in range(1, 16):
        for e in range(4):
            A('v_add_f32 v%d, v%d, v%d' % (vW + e, vW + e, vW + 4 * bb + e))
    A('v_cvt_pk_bf16_f32 v%d, v%d, v%d' % (vW, vW, vW + 1))
    A('v_cvt_pk_bf16_f32 v%d, v%d, v%d' % (vW + 1, vW + 2, vW + 3))
    A('v_lshlrev_b32 v%d, 3, v%d' % (vT, vLane))
    A('ds_write_b64 v%d, v[%d:%d] offset:%d' % (vT, vW, vW + 1, L_Q))
    A('v_mov_b32 v%d, 1' % (vT + 1))
    A('s_waitcnt lgkmcnt(0)')
    A('ds_write_b32 v%d, v%d offset:%d' % (vZ, vT + 1, L_FL + 0))
    stamp(5)
    A('s_cmp_lg_u32 s%d, 0' % sB)
    A('s_cbranch_scc1 L_end')
    A.c('x0 of workgroups with b==0: final reduction for 36 output columns')
    A('s_mov_b32 s%d, %d' % (sSPIN, SPIN))
    A.label('L_apoll')
    A('global_load_dword v%d, v%d, %s offset:192 sc1' % (vXs, vZ, sp(sDBG)))
    A('s_waitcnt vmcnt(0)')
    A('v_cmp_ne_u32 vcc, 16, v%d' % vXs)
    A('s_cbranch_vccz L_apoll_done')
    A('s_sleep 8')
    A('s_sub_u32 s%d, s%d, 1' % (sSPIN, sSPIN))
    A('s_cmp_lg_u32 s%d, 0' % sSPIN)
    A('s_cbranch_scc1 L_apoll')
    A.label('L_apoll_done')
    stamp(6)
    A('s_lshr_b32 s%d, s%d, 1' % (sT0, sA))
    A('s_and_b32 s%d, s%d, 1' % (sT1, sA))
    A('s_mul_i32 s%d, s%d, %d' % (sT2, sT0, 32 * P3_SLOT))
    A('s_mul_i32 s%d, s%d, 144' % (sT3, sT1))
    A('s_add_u32 s%d, s%d, s%d' % (sT2, sT2, sT3))
    A('s_add_u32 s%d, s%d, %d' % (sT2, sT2, P3_OFF))
    A('s_add_u32 s40, s%d, s%d' % (sWS, sT2))
    A('s_addc_u32 s41, s%d, 0' % (sWS + 1))
    vC8 = 9
    A('v_min_u32 v%d, 8, v%d' % (vC8, vC))
    vOf = 96
    A('v_mul_u32_u24 v%d, %d, v%d' % (vOf, P3_SLOT, vG))
    A('v_lshl_add_u32 v%d, v%d, 4, v%d' % (vOf, vC8, vOf))
    for i in range(1, 8):
        A('v_add_u32 v%d, %d, v%d' % (vOf + i, 4 * P3_SLOT * i, vOf))
    A('s_mul_i32 s%d, s%d, 72' % (sT4, sA))
    A('v_lshlrev_b32 v%d, 3, v%d' % (vOf + 8, vC8))
    A('v_add_u32 v%d, s%d, v%d' % (vOf + 8, sT4, vOf + 8))
    A('global_load_dwordx2 v[%d:%d], v%d, %s' % (vOf + 10, vOf + 11, vOf + 8, sp(sX)))
    A('s_mov_b32 s%d, %d' % (sSPIN, SPIN))
    A.label('L_fpoll')
    for i in range(8):
        A('global_load_dwordx4 %s, v%d, s[40:41] sc1' % (vr(vW + 8 * i), vOf + i))
        A('global_load_dwordx4 %s, v%d, s[40:41] offset:288 sc1' % (vr(vW + 8 * i + 4), vOf + i))
    A('s_waitcnt vmcnt(0)')
    A('v_max3_u32 v%d, v%d, v%d, v%d' % (vT, vW, vW + 1, vW + 2))
    for k in range(3, 63, 2):
        A('v_max3_u32 v%d, v%d, v%d, v%d' % (vT, vT, vW + k, vW + k + 1))
    A('v_max_u32 v%d, v%d, v%d' % (vT, vT, vW + 63))
    A('v_cmp_eq_u32 vcc, -1, v%d' % vT)
    A('s_cbranch_vccz L_fpoll_done')
    A('s_sub_u32 s%d, s%d, 1' % (sSPIN, sSPIN))
    A('s_cmp_lg_u32 s%d, 0' % sSPIN)
    A('s_cbranch_scc1 L_fpoll')
    A.label('L_fpoll_done')
    stamp(7)
    for i in range(1, 8):
        for e in range(8):
            A('v_add_f32 v%d, v%d, v%d' % (vW + e, vW + e, vW + 8 * i + e))
    for e in range(8):
        xrow('add', vW + e, vT)
    for e in range(0, 8, 2):
        rne2(vW + e, vW + e + 1, vT)
    A('v_lshlrev_b32 v%d, 16, v%d' % (vW + 8, vOf + 10))
    A('v_and_b32 v%d, s%d, v%d' % (vW + 9, sMASKHI, vOf + 10))
    A('v_lshlrev_b32 v%d, 16, v%d' % (vW + 10, vOf + 11))
    A('v_and_b32 v%d, s%d, v%d' % (vW + 11, sMASKHI, vOf + 11))
    for e in range(4):
        A('v_add_f32 v%d, v%d, v%d' % (vW + e, vW + e, vW + 8 + e))
    rne2(vW, vW + 1, vT)
    rne2(vW + 2, vW + 3, vT)
    for e in range(4):
        A('v_add_f32 v%d, v%d, v%d' % (vW + e, vW + e, vW + 4 + e))
    A('v_cvt_pk_bf16_f32 v%d, v%d, v%d' % (vW + 8, vW, vW + 1))
    A('v_cvt_pk_bf16_f32 v%d, v%d, v%d' % (vW + 9, vW + 2, vW + 3))
    A('s_mov_b64 exec, 0x1ff')
    A('global_store_dwordx2 v%d, v[%d:%d], %s' % (vOf + 8, vW + 8, vW + 9, sp(sOUT)))
    if STAMPS:
        stamp(8)
        A('s_mov_b64 exec, 1')
        A('s_sub_u32 s%d, s72, s64' % sT0)
        A('s_lshl_b32 s%d, s%d, 2' % (sT1, sA))
        A('v_mov_b32 v%d, s%d' % (vT, sT0))
        A('v_mov_b32 v%d, s%d' % (vT + 1, sT1))
        A('global_store_dword v%d, v%d, %s' % (vT + 1, vT, sp(sDBG)))
    A('s_branch L_end')

    A.label('L_x1')
    A.c('x1: gather gate/up, compute h')
    A('v_min_u32 v%d, 35, v%d' % (vT + 2, vLane))
    A('v_lshlrev_b32 v%d, 3, v%d' % (vT + 3, vT + 2))
    A('v_lshlrev_b32 v%d, 4, v%d' % (vT + 2, vT + 2))
    A('s_mul_i32 s%d, s%d, 576' % (sT1, sHH))
    A('s_add_u32 s%d, s%d, 1024' % (sT1, sT1))
    A('v_add_u32 v%d, s%d, v%d' % (vT + 2, sT1, vT + 2))
    lds_wait_flag(L_FL + 16, vZ, vT)
    stamp(4)
    A('s_mov_b32 s%d, %d' % (sSPIN, SPIN))
    A.label('L_hpoll')
    A('s_mov_b32 s48, s40')
    A('s_mov_b32 s49, s41')
    for bb in range(16):
        A('global_load_dwordx4 %s, v%d, s[48:49] sc1' % (vr(vW + 8 * bb), vT + 2))
        A('global_load_dwordx4 %s, v%d, s[48:49] offset:1152 sc1' % (vr(vW + 8 * bb + 4), vT + 2))
        if bb < 15:
            add64(48, 4096)
    A('s_waitcnt vmcnt(0)')
    A('v_max3_u32 v%d, v%d, v%d, v%d' % (vT + 1, vW, vW + 1, vW + 2))
    for k in range(3, 127, 2):
        A('v_max3_u32 v%d, v%d, v%d, v%d' % (vT + 1, vT + 1, vW + k, vW + k + 1))
    A('v_max_u32 v%d, v%d, v%d' % (vT + 1, vT + 1, vW + 127))
    A('v_cmp_eq_u32 vcc, -1, v%d' % (vT + 1))
    A('s_cbranch_vccz L_hpoll_done')
    A('s_sleep 8')
    A('s_sub_u32 s%d, s%d, 1' % (sSPIN, sSPIN))
    A('s_cmp_lg_u32 s%d, 0' % sSPIN)
    A('s_cbranch_scc1 L_hpoll')
    A.label('L_hpoll_done')
    for bb in range(1, 16):
        for e in range(8):
            A('v_add_f32 v%d, v%d, v%d' % (vW + e, vW + e, vW + 8 * bb + e))
    for e in range(0, 8, 2):
        rne2(vW + e, vW + e + 1, vT + 1)
    for e in range(4):
        g = vW + e
        A('v_mul_f32 v%d, s%d, v%d' % (vW + 8 + e, sLOG2E, g))
        A('v_exp_f32 v%d, -v%d' % (vW + 8 + e, vW + 8 + e))
        A.nop(1)
        A('v_add_f32 v%d, 1.0, v%d' % (vW + 8 + e, vW + 8 + e))
        A('v_rcp_f32 v%d, v%d' % (vW + 8 + e, vW + 8 + e))
        A.nop(1)
        A('v_mul_f32 v%d, v%d, v%d' % (g, g, vW + 8 + e))
    rne2(vW, vW + 1, vT + 1)
    rne2(vW + 2, vW + 3, vT + 1)
    for e in range(4):
        A('v_mul_f32 v%d, v%d, v%d' % (vW + e, vW + e, vW + 4 + e))
    A('v_cvt_pk_bf16_f32 v%d, v%d, v%d' % (vW + 8, vW, vW + 1))
    A('v_cvt_pk_bf16_f32 v%d, v%d, v%d' % (vW + 9, vW + 2, vW + 3))
    A('ds_write_b64 v%d, v[%d:%d] offset:%d' % (vT + 3, vW + 8, vW + 9, L_H))
    A('v_mov_b32 v%d, 1' % (vT + 1))
    A('s_waitcnt lgkmcnt(0)')
    A('ds_write_b32 v%d, v%d offset:%d' % (vZ, vT + 1, L_FL + 4))
    A('s_branch L_end')

    def p3_slot():
        A('s_lshl_b32 s%d, s%d, 5' % (sT1, sCB))
        A('s_lshl_b32 s%d, s%d, 1' % (sT0, sA))
        A('s_add_u32 s%d, s%d, s%d' % (sT1, sT1, sT0))
        A('s_add_u32 s%d, s%d, s%d' % (sT1, sT1, sHH))
        A('s_mul_i32 s%d, s%d, %d' % (sT1, sT1, P3_SLOT))
        A('s_add_u32 s%d, s%d, %d' % (sT1, sT1, P3_OFF))
        A('s_add_u32 s48, s%d, s%d' % (sWS, sT1))
        A('s_addc_u32 s49, s%d, 0' % (sWS + 1))

    A.label('L_x2')
    A.c('x2: wo tile (128 rows x 72 cols)')
    lds_wait_eq(L_FL + 20, 4, vZ, vT)
    stamp(3)
    vC8, vO1, vO2 = 9, 12, 13
    vR = 128
    vTB = 96
    vAcc = 32
    A('v_min_u32 v%d, 8, v%d' % (vC8, vC))
    A('v_mul_u32_u24 v%d, %d, v%d' % (vO1, 8 * 1152, vG))
    A('v_lshl_add_u32 v%d, v%d, 4, v%d' % (vO1, vC8, vO1))
    A('v_add_u32 v%d, %d, v%d' % (vO2, 4 * 1152, vO1))
    A('s_lshl_b32 s%d, s%d, 1' % (sT0, sA))
    A('s_add_u32 s%d, s%d, s%d' % (sT0, sT0, sHH))
    A('s_mul_i32 s%d, s%d, %d' % (sT1, sT0, 128 * 1152))
    A('s_mul_i32 s%d, s%d, 144' % (sT2, sCB))
    A('s_add_u32 s%d, s%d, s%d' % (sT1, sT1, sT2))
    A('s_add_u32 s40, s%d, s%d' % (sWO, sT1))
    A('s_addc_u32 s41, s%d, 0' % (sWO + 1))
    for blk in range(4):
        for i in range(8):
            if blk * 8 + i >= W_INFL:
                A('s_waitcnt vmcnt(%d)' % (W_INFL - 1))
            A('global_load_dwordx4 %s, v%d, s[40:41] offset:%d%s' % (vr(vR + 32 * blk + 4 * i), vO1 if i < 4 else vO2, (i & 3) * 1152, NT))
        if blk < 3:
            add64(40, 32 * 1152)
    A('s_mul_i32 s%d, s%d, %d' % (sT1, sT0, 16 * P2_SLOT))
    A('s_add_u32 s%d, s%d, %d' % (sT1, sT1, P2_OFF))
    A('s_add_u32 s42, s%d, s%d' % (sWS, sT1))
    A('s_addc_u32 s43, s%d, 0' % (sWS + 1))
    p3_slot()
    vG1, vG2, vM1, vM2 = 14, 15, 16, 17
    A('v_mul_u32_u24 v%d, %d, v%d' % (vM1, P2_SLOT, vHalf))
    A('v_lshl_add_u32 v%d, v%d, 4, v%d' % (vG1, vCi, vM1))
    A('v_add_u32 v%d, %d, v%d' % (vG2, 4 * 2 * P2_SLOT, vG1))
    A('v_add_u32 v%d, 512, v%d' % (vM1, vM1))
    A('v_add_u32 v%d, %d, v%d' % (vM2, 4 * 2 * P2_SLOT, vM1))
    tb = [vTB, vR, vR + 32, vR + 64]
    for blk in range(4):
        A('s_waitcnt vmcnt(%d)' % (24 - 8 * blk))
        transpose8(vR + 32 * blk, tb[blk])
    stamp(4)
    A.c('go received <=> all 16 workgroups of the group have reset their P2 slots')
    lds_wait_flag(L_FL + 16, vZ, vT)
    vOo = 224
    vMl = 64
    A('s_mov_b32 s%d, %d' % (sSPIN, SPIN))
    A.label('L_opoll')
    for i in range(8):
        A('global_load_dwordx4 %s, v%d, s[42:43] offset:%d sc1' % (vr(vOo + 4 * i), vG1 if i < 4 else vG2, (i & 3) * 2 * P2_SLOT))
        A('global_load_dwordx2 v[%d:%d], v%d, s[42:43] offset:%d sc1' % (vMl + 2 * i, vMl + 2 * i + 1, vM1 if i < 4 else vM2, (i & 3) * 2 * P2_SLOT))
    A('s_waitcnt vmcnt(0)')
    A('v_max3_u32 v%d, v%d, v%d, v%d' % (vT, vOo, vOo + 1, vOo + 2))
    for k in range(3, 31, 2):
        A('v_max3_u32 v%d, v%d, v%d, v%d' % (vT, vT, vOo + k, vOo + k + 1))
    A('v_max_u32 v%d, v%d, v%d' % (vT, vT, vOo + 31))
    for k in range(0, 16, 2):
        A('v_max3_u32 v%d, v%d, v%d, v%d' % (vT, vT, vMl + k, vMl + k + 1))
    A('v_cmp_eq_u32 vcc, -1, v%d' % vT)
    A('s_cbranch_vccz L_opoll_done')
    A('s_sub_u32 s%d, s%d, 1' % (sSPIN, sSPIN))
    A('s_cmp_lg_u32 s%d, 0' % sSPIN)
    A('s_cbranch_scc1 L_opoll')
    A.label('L_opoll_done')
    stamp(5)
    vM, vL = 10, 11
    A('v_max3_f32 v%d, v%d, v%d, v%d' % (vM, vMl, vMl + 2, vMl + 4))
    A('v_max3_f32 v%d, v%d, v%d, v%d' % (vM, vM, vMl + 6, vMl + 8))
    A('v_max3_f32 v%d, v%d, v%d, v%d' % (vM, vM, vMl + 10, vMl + 12))
    A('v_max_f32 v%d, v%d, v%d' % (vM, vM, vMl + 14))
    xhalf('max', vM, vT)
    for i in range(8):
        A('v_sub_f32 v%d, v%d, v%d' % (vMl + 2 * i, vMl + 2 * i, vM))
        A('v_mul_f32 v%d, s%d, v%d' % (vMl + 2 * i, sLOG2E, vMl + 2 * i))
        A('v_exp_f32 v%d, v%d' % (vMl + 2 * i, vMl + 2 * i))
    A.nop(1)
    A('v_mul_f32 v%d, v%d, v%d' % (vL, vMl, vMl + 1))
    for i in range(1, 8):
        A('v_fmac_f32 v%d, v%d, v%d' % (vL, vMl + 2 * i, vMl + 2 * i + 1))
    vO = 80
    for e in range(4):
        A('v_mul_f32 v%d, v%d, v%d' % (vO + e, vMl, vOo + e))
        for i in range(1, 8):
            A('v_fmac_f32 v%d, v%d, v%d' % (vO + e, vMl + 2 * i, vOo + 4 * i + e))
    xhalf('add', vL, vT)
    for e in range(4):
        xhalf('add', vO + e, vT)
    A('v_rcp_f32 v%d, v%d' % (vL, vL))
    A.nop(1)
    for e in range(4):
        A('v_mul_f32 v%d, v%d, v%d' % (vO + e, vO + e, vL))
    A('v_cvt_pk_bf16_f32 v%d, v%d, v%d' % (vO, vO, vO + 1))
    A('v_cvt_pk_bf16_f32 v%d, v%d, v%d' % (vO + 1, vO + 2, vO + 3))
    A('v_lshlrev_b32 v%d, 3, v%d' % (vT, vCi))
    A('ds_write_b64 v%d, v[%d:%d] offset:%d' % (vT, vO, vO + 1, L_OB))
    A('v_lshlrev_b32 v%d, 4, v%d' % (vT, vG))
    A('s_waitcnt lgkmcnt(0)')
    vAo = 64
    for blk in range(4):
        A('ds_read_b128 %s, v%d offset:%d' % (vr(vAo + 4 * blk), vT, L_OB + 64 * blk))
    A('s_waitcnt lgkmcnt(0)')
    for blk in range(4):
        for j in range(8):
            A('v_mfma_f32_16x16x32_bf16 %s, %s, %s, %s' % (vr(vAcc + 4 * j), vr(vAo + 4 * blk), vr(tb[blk] + 4 * j),
                                                            '0' if blk == 0 else vr(vAcc + 4 * j)))
    A.nop(10)
    for j in range(8):
        A('v_mov_b32 v%d, v%d' % (vMl + j, vAcc + 4 * j))
    A('v_lshlrev_b32 v%d, 5, v%d' % (vT, vC))
    A('s_mov_b64 exec, 0x1ff')
    A('global_store_dwordx4 v%d, %s, s[48:49] sc1' % (vT, vr(vMl)))
    A('global_store_dwordx4 v%d, %s, s[48:49] offset:16 sc1' % (vT, vr(vMl + 4)))
    A('s_branch L_end')

    A.label('L_x3')
    A.c('x3: w_down tile (144 rows x 72 cols)')
    lds_wait_eq(L_FL + 20, 4, vZ, vT)
    stamp(3)
    vR = 96
    vTB = 64
    vAcc = 32
    vO3, vO4 = 14, 15
    A('v_min_u32 v%d, 8, v%d' % (vC8, vC))
    A('v_mul_u32_u24 v%d, %d, v%d' % (vO1, 8 * 1152, vG))
    A('v_lshl_add_u32 v%d, v%d, 4, v%d' % (vO1, vC8, vO1))
    A('v_add_u32 v%d, %d, v%d' % (vO2, 4 * 1152, vO1))
    A('v_and_b32 v%d, 1, v%d' % (vO3, vG))
    A('v_mul_u32_u24 v%d, %d, v%d' % (vO3, 8 * 1152, vO3))
    A('v_lshl_add_u32 v%d, v%d, 4, v%d' % (vO3, vC8, vO3))
    A('v_add_u32 v%d, %d, v%d' % (vO4, 4 * 1152, vO3))
    A('s_lshl_b32 s%d, s%d, 1' % (sT0, sA))
    A('s_add_u32 s%d, s%d, s%d' % (sT0, sT0, sHH))
    A('s_mul_i32 s%d, s%d, %d' % (sT1, sT0, 144 * 1152))
    A('s_mul_i32 s%d, s%d, 144' % (sT2, sCB))
    A('s_add_u32 s%d, s%d, s%d' % (sT1, sT1, sT2))
    A('s_add_u32 s40, s%d, s%d' % (sWD, sT1))
    A('s_addc_u32 s41, s%d, 0' % (sWD + 1))
    for blk in range(5):
        o1, o2 = (vO1, vO2) if blk < 4 else (vO3, vO4)
        for i in range(8):
            if blk * 8 + i >= W_INFL:
                A('s_waitcnt vmcnt(%d)' % (W_INFL - 1))
            A('global_load_dwordx4 %s, v%d, s[40:41] offset:%d%s' % (vr(vR + 32 * blk + 4 * i), o1 if i < 4 else o2, (i & 3) * 1152, NT))
        if blk < 4:
            add64(40, 32 * 1152)
    p3_slot()
    lds_wait_flag(L_FL + 4, vZ, vT)
    stamp(4)
    A('v_lshlrev_b32 v%d, 4, v%d' % (vT, vG))
    ah = [16, 20, 24, 28, 4 * 0 + 0]
    ah[4] = 0
    A('v_mov_b32 v%d, v%d' % (vO2, vC))
    vCc = vO2
    for blk in range(5):
        A('ds_read_b128 %s, v%d offset:%d' % (vr(ah[blk]), vT, L_H + 64 * blk))
    A('s_waitcnt lgkmcnt(0)')
    for blk in range(5):
        A('s_waitcnt vmcnt(%d)' % (32 - 8 * blk))
        transpose8(vR + 32 * blk, vTB)
        A.nop(2)
        for j in range(8):
            A('v_mfma_f32_16x16x32_bf16 %s, %s, %s, %s' % (vr(vAcc + 4 * j), vr(ah[blk]), vr(vTB + 4 * j),
                                                            '0' if blk == 0 else vr(vAcc + 4 * j)))
    A.nop(10)
    for j in range(8):
        A('v_mov_b32 v%d, v%d' % (vTB + j, vAcc + 4 * j))
    A('v_lshlrev_b32 v%d, 5, v%d' % (vT, vCc))
    A('s_mov_b64 exec, 0x1ff')
    A('global_store_dwordx4 v%d, %s, s[48:49] offset:288 sc1' % (vT, vr(vTB)))
    A('global_store_dwordx4 v%d, %s, s[48:49] offset:304 sc1' % (vT, vr(vTB + 4)))

    A.label('L_end')
    if STAMPS:
        A('s_cmp_ge_u32 s2, 256')
        A('s_cbranch_scc1 L_end2')
        stamp(15)
        A('s_mov_b64 exec, 1')
        A('s_lshl_b32 s60, s2, 3')
        A('s_add_u32 s60, s60, s%d' % sWAVE)
        A('s_lshl_b32 s60, s60, 6')
        A('s_add_u32 s60, s60, %d' % ST_OFF)
        A('s_add_u32 s60, s%d, s60' % sWS)
        A('s_addc_u32 s61, s%d, 0' % (sWS + 1))
        A('v_mov_b32 v8, 0')
        for i in range(16):
            A('v_mov_b32 v9, s%d' % (64 + i))
            A('global_store_dword v8, v9, s[60:61] offset:%d' % (4 * i))
        A.label('L_end2')
    A('s_endpgm')
    A.l.append('.section .rodata,"a"')
    A.l.append('.p2align 6')
    A.l.append('.amdhsa_kernel %s_kernel' % NAME)
    A.l.append('  .amdhsa_next_free_vgpr 256')
    A.l.append('  .amdhsa_next_free_sgpr 96')
    A.l.append('  .amdhsa_accum_offset 256')
    A.l.append('  .amdhsa_group_segment_fixed_size 0')
    A.l.append('  .amdhsa_kernarg_size 96')
    A.l.append('  .amdhsa_user_sgpr_count 2')
    A.l.append('  .amdhsa_user_sgpr_kernarg_segment_ptr 1')
    A.l.append('  .amdhsa_system_sgpr_workgroup_id_x 1')
    A.l.append('.end_amdhsa_kernel')


gen()
out = sys.argv[1] if len(sys.argv) > 1 else 'cdna_kernels/%s.s' % NAME
open(out, 'w').write('\n'.join(A.l) + '\n')
print('wrote', out, len(A.l), 'lines')
```

```python
import sys, os

NAME = 'parallel_sum__gqa_block_cached__swiglu_ffn__decode'
HDR = open('cdna_kernels/%s.s.ref' % NAME).read().split('; Override launch')[0]

NT = os.environ.get('NT', ' nt')
NTW = os.environ.get('NTW', ' nt')
EPLD = os.environ.get('EPLD', ' sc1')
LD1 = os.environ.get('LD1', 'sc1')
ST1 = os.environ.get('ST1', 'sc1')
SPIN = 400000
KV_INFL = int(os.environ.get('KV_INFL', '12'))
KV_PRE = int(os.environ.get('KV_PRE', '4'))
V_INFL = int(os.environ.get('V_INFL', os.environ.get('KV_INFL', '12')))
NV_SIG = int(os.environ.get('NV_SIG', '32'))
STAMPS = bool(int(os.environ.get('STAMPS', '0')))
WD_INFL = int(os.environ.get('WD_INFL', '40'))
POLL_SLEEP = int(os.environ.get('POLL_SLEEP', '40'))
PRE_SLEEP = int(os.environ.get('PRE_SLEEP', '80'))
P2_SLEEP = int(os.environ.get('P2_SLEEP', '16'))
P3_SLEEP = int(os.environ.get('P3_SLEEP', '2'))
P3B_SLEEP = int(os.environ.get('P3B_SLEEP', '16'))
P2_LIGHT = int(os.environ.get('P2_LIGHT', '8'))
P2_SPEC = int(os.environ.get('P2_SPEC', '0'))
P3_LIGHT = int(os.environ.get('P3_LIGHT', '0'))
PRE_SLEEP_H = int(os.environ.get('PRE_SLEEP_H', '127'))
ST_OFF = 8 << 20

L_FL = 0
F_QRDY, F_HRDY, F_KVCNT, F_TAGRDY, F_VISS, F_S1ISS, F_TAG, F_P2PUB, F_APUB, F_BPUB = [4 * i for i in range(10)]
L_Q = 256
L_OB = 768
L_ML = 1024
L_H = 1152
L_XF = 2816
L_OC = 8192
L_FR = 12288
L_K = 16384
LDS_BYTES = L_K + 4 * 32768

EP_OFF = 0
P1_OFF = 1 << 19
P1_SLOT = 8192
P2_OFF = 1 << 20
P2_SLOT = 1280
P3_OFF = 2 << 20
P3_SLOT = 1152

sX, sK, sV, sWQ, sWO, sBX, sWG, sWU, sWD, sOUT, sDBG, sWS = [8 + 2 * i for i in range(12)]
sA, sB, sWAVE, sHH, sCB = 32, 33, 34, 35, 36
sSELLO, sSELHI, sMASKHI, sLOG2E, sSPIN, sTAG, sXW = 37, 38, 39, 44, 45, 46, 47
sT0, sT1, sT2, sT3 = 52, 53, 54, 55
sT4, sT5, sT6, sT7 = 56, 57, 58, 59


class Asm:
    def __init__(self):
        self.l = []
        self.n = 0

    def __call__(self, s):
        self.l.append('    ' + s)

    def label(self, s):
        self.l.append(s + ':')

    def c(self, s):
        self.l.append('    ; ' + s)

    def newlabel(self, p):
        self.n += 1
        return 'L_%s_%d' % (p, self.n)

    def nop(self, n):
        while n > 0:
            k = min(n, 16)
            self('s_nop %d' % (k - 1))
            n -= k


A = Asm()


def stamp(i):
    if not STAMPS:
        return
    A('s_memrealtime s[62:63]')
    A('s_waitcnt lgkmcnt(0)')
    A('s_mov_b32 s%d, s62' % (64 + i))


def sp(r):
    return 's[%d:%d]' % (r, r + 1)


def vr(r, n=4):
    return 'v[%d:%d]' % (r, r + n - 1)


def allreduce(op, v, t):
    for d in ['quad_perm:[1,0,3,2]', 'quad_perm:[2,3,0,1]', 'row_half_mirror', 'row_mirror']:
        A.nop(2)
        A('v_%s_f32_dpp v%d, v%d, v%d %s row_mask:0xf bank_mask:0xf' % (op, v, v, v, d))
    xrow(op, v, t)


def xrow(op, v, t):
    for sw in ['v_permlane16_swap_b32', 'v_permlane32_swap_b32']:
        A('v_mov_b32 v%d, v%d' % (t, v))
        A.nop(2)
        A('%s v%d, v%d' % (sw, v, t))
        A('v_%s_f32 v%d, v%d, v%d' % (op, v, v, t))


def xhalf(op, v, t):
    A('v_mov_b32 v%d, v%d' % (t, v))
    A.nop(2)
    A('v_permlane32_swap_b32 v%d, v%d' % (v, t))
    A('v_%s_f32 v%d, v%d, v%d' % (op, v, v, t))


def rne(v):
    A('v_cvt_pk_bf16_f32 v%d, v%d, v%d' % (v, v, v))
    A('v_lshlrev_b32 v%d, 16, v%d' % (v, v))


def rne2(a, b, t):
    A('v_cvt_pk_bf16_f32 v%d, v%d, v%d' % (t, a, b))
    A('v_lshlrev_b32 v%d, 16, v%d' % (a, t))
    A('v_and_b32 v%d, s%d, v%d' % (b, sMASKHI, t))


def add64(s, imm):
    A('s_add_u32 s%d, s%d, %d' % (s, s, imm))
    A('s_addc_u32 s%d, s%d, 0' % (s + 1, s + 1))


def lds_wait(off, val, vz, vt, sleep=1):
    lp = A.newlabel('lw')
    dn = A.newlabel('lwd')
    A('s_mov_b32 s%d, %d' % (sSPIN, SPIN * 8))
    A.label(lp)
    A('ds_read_b32 v%d, v%d offset:%d' % (vt, vz, L_FL + off))
    A('s_waitcnt lgkmcnt(0)')
    A('v_readfirstlane_b32 s%d, v%d' % (sT0, vt))
    if val is None:
        A('s_cmp_lg_u32 s%d, 0' % sT0)
    else:
        A('s_cmp_eq_u32 s%d, %d' % (sT0, val))
    A('s_cbranch_scc1 %s' % dn)
    A('s_sleep %d' % sleep)
    A('s_sub_u32 s%d, s%d, 1' % (sSPIN, sSPIN))
    A('s_cmp_lg_u32 s%d, 0' % sSPIN)
    A('s_cbranch_scc1 %s' % lp)
    A.label(dn)


def lds_inc(off, vz, vt, ret=False):
    A('s_mov_b64 exec, 1')
    A('v_mov_b32 v%d, 1' % vt)
    A('s_waitcnt lgkmcnt(0)')
    if ret:
        A('ds_add_rtn_u32 v%d, v%d, v%d offset:%d' % (vt, vz, vt, L_FL + off))
        A('s_waitcnt lgkmcnt(0)')
        A('v_readfirstlane_b32 s%d, v%d' % (sT0, vt))
    else:
        A('ds_add_u32 v%d, v%d offset:%d' % (vz, vt, L_FL + off))
    A('s_mov_b64 exec, -1')


def transpose8(src, dst):
    for j in range(8):
        for q in range(4):
            A('v_perm_b32 v%d, v%d, v%d, s%d' % (dst + 4 * j + q, src + 4 * (2 * q + 1) + (j >> 1),
                                                  src + 4 * (2 * q) + (j >> 1), sSELHI if j & 1 else sSELLO))


def any_sentinel(regs, vt):
    regs = list(regs)
    A('v_max3_u32 v%d, v%d, v%d, v%d' % (vt, regs[0], regs[1], regs[2]))
    k = 3
    while k + 1 < len(regs):
        A('v_max3_u32 v%d, v%d, v%d, v%d' % (vt, vt, regs[k], regs[k + 1]))
        k += 2
    if k < len(regs):
        A('v_max_u32 v%d, v%d, v%d' % (vt, vt, regs[k]))
    A('v_cmp_eq_u32 vcc, -1, v%d' % vt)


def bad_tags(regs, vt):
    regs = list(regs)
    A('v_max3_u32 v%d, v%d, v%d, v%d' % (vt, regs[0], regs[1], regs[-1]))
    A('v_min3_u32 v%d, v%d, v%d, v%d' % (vt + 1, regs[0], regs[1], regs[-1]))
    k = 2
    while k + 1 < len(regs):
        A('v_max3_u32 v%d, v%d, v%d, v%d' % (vt, vt, regs[k], regs[k + 1]))
        A('v_min3_u32 v%d, v%d, v%d, v%d' % (vt + 1, vt + 1, regs[k], regs[k + 1]))
        k += 2
    A('v_xor_b32 v%d, s%d, v%d' % (vt, sTAG, vt))
    A('v_xor_b32 v%d, s%d, v%d' % (vt + 1, sTAG, vt + 1))
    A('v_or_b32 v%d, v%d, v%d' % (vt, vt, vt + 1))
    A('v_cmp_ne_u32 vcc, 0, v%d' % vt)


def light_poll(voff, sbase, imm, nlanes, vd, sleep):
    lp = A.newlabel('lp')
    A('s_mov_b32 s%d, %d' % (sSPIN, SPIN))
    if nlanes < 32:
        A('s_mov_b64 exec, 0x%x' % ((1 << nlanes) - 1))
    else:
        A('s_mov_b32 exec_hi, 0')
    A.label(lp)
    A('global_load_dwordx2 v[%d:%d], v%d, s[%d:%d] offset:%d sc1' % (vd, vd + 1, voff, sbase, sbase + 1, imm))
    A('s_waitcnt vmcnt(0)')
    A('v_cmp_ne_u32 vcc, s%d, v%d' % (sTAG, vd + 1))
    A('s_cbranch_vccz %s_d' % lp)
    spin_back(lp, sleep)
    A.label(lp + '_d')
    A('s_mov_b64 exec, -1')


def get_tag(vz, vt):
    lds_wait(F_TAGRDY, None, vz, vt)
    A('ds_read_b32 v%d, v%d offset:%d' % (vt, vz, L_FL + F_TAG))
    A('s_waitcnt lgkmcnt(0)')
    A('v_readfirstlane_b32 s%d, v%d' % (sTAG, vt))
    A.nop(2)


def granules(dst, srcs):
    for i, r in enumerate(srcs):
        A('v_mov_b32 v%d, v%d' % (dst + 2 * i, r))
        A('v_mov_b32 v%d, s%d' % (dst + 2 * i + 1, sTAG))


def spin_back(lp, sleep=0):
    if sleep:
        A('s_sleep %d' % sleep)
    A('s_sub_u32 s%d, s%d, 1' % (sSPIN, sSPIN))
    A('s_cmp_lg_u32 s%d, 0' % sSPIN)
    A('s_cbranch_scc1 %s' % lp)


WD_GATE = (F_QRDY, None) if os.environ.get('WD_GATE', 'v') == 'q' else (F_VISS, 4)


def gen():
    A.l.append(HDR.rstrip('\n'))
    A.l.append('; @launch grid=(256,1,1) block=(512,1,1) lds=%d' % LDS_BYTES)
    A.l.append('.amdgcn_target "amdgcn-amd-amdhsa--gfx950"')
    A.l.append('.text')
    A.l.append('.globl %s_kernel' % NAME)
    A.l.append('.p2align 8')
    A.l.append('.type %s_kernel,@function' % NAME)
    A.label('%s_kernel' % NAME)
    A('s_cmp_ge_u32 s2, 256')
    A('s_cbranch_scc1 L_end')
    A('s_load_dwordx16 s[8:23], s[0:1], 0')
    A('s_load_dwordx8 s[24:31], s[0:1], 64')
    vLane, vC, vG, vZ = 1, 3, 4, 7
    if STAMPS:
        for i in range(16):
            A('s_mov_b32 s%d, 0' % (64 + i))
        stamp(0)
    A('v_and_b32 v1, 63, v0')
    A('v_lshrrev_b32 v2, 6, v0')
    A('v_and_b32 v%d, 15, v1' % vC)
    A('v_lshrrev_b32 v%d, 4, v1' % vG)
    A('v_mov_b32 v%d, 0' % vZ)
    A('v_readfirstlane_b32 s%d, v2' % sWAVE)
    A('s_and_b32 s%d, s2, 7' % sA)
    A('s_lshl_b32 s%d, s%d, 1' % (sA, sA))
    A('s_bfe_u32 s3, s2, 0x10003')
    A('s_or_b32 s%d, s%d, s3' % (sA, sA))
    A('s_lshr_b32 s%d, s2, 4' % sB)
    A('s_lshr_b32 s%d, s%d, 3' % (sHH, sB))
    A('s_and_b32 s%d, s%d, 7' % (sCB, sB))
    A('s_mov_b32 s%d, 0x05040100' % sSELLO)
    A('s_mov_b32 s%d, 0x07060302' % sSELHI)
    A('s_mov_b32 s%d, 0xffff0000' % sMASKHI)
    A('s_mov_b32 s%d, 0x3fb8aa3b' % sLOG2E)
    A.c('LDS init: first 8 KiB zero (16 B per thread)')
    A('v_mov_b32 v8, 0')
    A('v_mov_b32 v9, 0')
    A('v_mov_b32 v10, 0')
    A('v_mov_b32 v11, 0')
    A('v_lshlrev_b32 v12, 4, v0')
    A('ds_write_b128 v12, v[8:11]')
    A('s_waitcnt lgkmcnt(0)')
    A('s_barrier')
    A('s_cmp_ge_u32 s%d, 4' % sWAVE)
    A('s_cbranch_scc1 L_aux')

    A.c('---------------- KV waves')
    vKoff, vVoff, vT = 5, 6, 8
    vQ, vS, vKt, vAcc, vV = 16, 32, 64, 96, 128
    vP = 16
    A('v_lshlrev_b32 v%d, 8, v%d' % (vKoff, vC))
    A('v_lshl_add_u32 v%d, v%d, 4, v%d' % (vKoff, vG, vKoff))
    A('v_lshlrev_b32 v%d, 10, v%d' % (vVoff, vG))
    A('v_lshl_add_u32 v%d, v%d, 4, v%d' % (vVoff, vC, vVoff))
    A('s_lshl_b32 s%d, s%d, 21' % (sT4, sA))
    A('s_lshl_b32 s%d, s%d, 17' % (sT5, sB))
    A('s_add_u32 s%d, s%d, s%d' % (sT4, sT4, sT5))
    A('s_lshl_b32 s%d, s%d, 15' % (sT5, sWAVE))
    A('s_add_u32 s%d, s%d, s%d' % (sT4, sT4, sT5))
    A('s_add_u32 s%d, s%d, %d' % (sT6, sT5, L_K))
    A('s_add_u32 s40, s%d, s%d' % (sK, sT4))
    A('s_addc_u32 s41, s%d, 0' % (sK + 1))
    A('s_add_u32 s42, s%d, s%d' % (sV, sT4))
    A('s_addc_u32 s43, s%d, 0' % (sV + 1))
    nld = 0
    sQKD, sRET = 60, 94
    A('s_mov_b32 s%d, 0' % sQKD)
    for t in range(8):
        for j in range(4):
            if nld == KV_PRE:
                lds_wait(F_S1ISS, 3, vZ, vT)
            A('s_add_u32 m0, s%d, %d' % (sT6, (4 * t + j) * 1024 - 64 * j))
            if nld >= KV_INFL:
                A('s_waitcnt vmcnt(%d)' % (KV_INFL - 1))
            else:
                A('s_nop 0')
            A('global_load_lds_dwordx4 v%d, s[40:41] offset:%d%s' % (vKoff, 64 * j, NT))
            nld += 1
        add64(40, 4096)
    nv = 0
    for u in range(4):
        for hf in range(2):
            for i in range(4):
                A('s_waitcnt vmcnt(%d)' % (V_INFL - 1))
                A('global_load_dwordx4 %s, v%d, s[42:43] offset:%d%s' % (vr(vV + (u * 8 + hf * 4 + i) * 4), vVoff, i * 256, NT))
                nld += 1
                nv += 1
            add64(42, 4096)
            if nv == NV_SIG and nv < 32:
                lds_inc(F_VISS, vZ, vT)
            if nv >= V_INFL and nv < 32:
                sk = A.newlabel('noqk')
                A('s_cmp_lg_u32 s%d, 0' % sQKD)
                A('s_cbranch_scc1 %s' % sk)
                A('ds_read_b32 v%d, v%d offset:%d' % (vT, vZ, L_FL + F_QRDY))
                A('s_waitcnt lgkmcnt(0)')
                A('v_readfirstlane_b32 s%d, v%d' % (sT0, vT))
                A('s_cmp_eq_u32 s%d, 0' % sT0)
                A('s_cbranch_scc1 %s' % sk)
                A('s_call_b64 s[%d:%d], L_qk' % (sRET, sRET + 1))
                A.label(sk)
    stamp(1)
    if NV_SIG >= 32:
        lds_inc(F_VISS, vZ, vT)
    A('s_cmp_lg_u32 s%d, 0' % sQKD)
    A('s_cbranch_scc1 L_qk_done')
    lds_wait(F_QRDY, None, vZ, vT)
    A('s_call_b64 s[%d:%d], L_qk' % (sRET, sRET + 1))
    A('s_branch L_qk_done')
    A.c('---- QK^T + softmax subroutine (all K loads of this wave have landed when it is called)')
    A.label('L_qk')
    stamp(2)
    A('s_mov_b32 s%d, 1' % sQKD)
    A('v_and_b32 v%d, 1, v%d' % (vT, vLane))
    A('v_lshlrev_b32 v%d, 8, v%d' % (vT, vT))
    A('v_lshl_add_u32 v%d, v%d, 4, v%d' % (vT, vG, vT))
    for j in range(4):
        A('ds_read_b128 %s, v%d offset:%d' % (vr(vQ + 4 * j), vT, L_Q + 64 * j))
    A('v_lshlrev_b32 v%d, 4, v%d' % (vT + 1, vLane))
    A('v_add_u32 v%d, s%d, v%d' % (vT + 1, sT6, vT + 1))
    for bt in range(4):
        for tt in range(2):
            for j in range(4):
                A('ds_read_b128 %s, v%d offset:%d' % (vr(vKt + (tt * 4 + j) * 4), vT + 1, ((2 * bt + tt) * 4 + j) * 1024))
        A('s_waitcnt lgkmcnt(0)')
        for tt in range(2):
            t = 2 * bt + tt
            for j in range(4):
                A('v_mfma_f32_16x16x32_bf16 %s, %s, %s, %s' % (vr(vS + 4 * t), vr(vKt + (tt * 4 + j) * 4), vr(vQ + 4 * j),
                                                                '0' if j == 0 else vr(vS + 4 * t)))
    A.nop(10)
    A.c('round scores like the reference: bf16(bf16(raw) * scale)')
    A('s_mov_b32 s%d, 0x3db504f3' % sT0)
    for k in range(0, 32, 2):
        rne2(vS + k, vS + k + 1, vT)
        A('v_mul_f32 v%d, s%d, v%d' % (vS + k, sT0, vS + k))
        A('v_mul_f32 v%d, s%d, v%d' % (vS + k + 1, sT0, vS + k + 1))
        rne2(vS + k, vS + k + 1, vT)
    vM, vL = 10, 11
    A('v_max3_f32 v%d, v%d, v%d, v%d' % (vM, vS, vS + 1, vS + 2))
    for k in range(3, 31, 2):
        A('v_max3_f32 v%d, v%d, v%d, v%d' % (vM, vM, vS + k, vS + k + 1))
    A('v_max_f32 v%d, v%d, v%d' % (vM, vM, vS + 31))
    xrow('max', vM, vT)
    for k in range(32):
        A('v_sub_f32 v%d, v%d, v%d' % (vS + k, vS + k, vM))
        A('v_mul_f32 v%d, s%d, v%d' % (vS + k, sLOG2E, vS + k))
        A('v_exp_f32 v%d, v%d' % (vS + k, vS + k))
    A.nop(1)
    A('v_add_f32 v%d, v%d, v%d' % (vL, vS, vS + 1))
    for k in range(2, 32):
        A('v_add_f32 v%d, v%d, v%d' % (vL, vL, vS + k))
    xrow('add', vL, vT)
    for k in range(16):
        A('v_cvt_pk_bf16_f32 v%d, v%d, v%d' % (vP + k, vS + 2 * k, vS + 2 * k + 1))
    stamp(3)
    A('s_setpc_b64 s[%d:%d]' % (sRET, sRET + 1))
    A.label('L_qk_done')
    stamp(4)
    A.c('PV')
    for u in range(4):
        A('s_waitcnt vmcnt(%d)' % (24 - 8 * u))
        transpose8(vV + 32 * u, vKt)
        A.nop(2)
        for j in range(8):
            A('v_mfma_f32_16x16x32_bf16 %s, %s, %s, %s' % (vr(vAcc + 4 * j), vr(vP + 4 * u), vr(vKt + 4 * j),
                                                            '0' if u == 0 else vr(vAcc + 4 * j)))
    A('s_lshl_b32 s%d, s%d, 10' % (sT0, sWAVE))
    A('v_lshlrev_b32 v%d, 5, v%d' % (vT, vC))
    A('v_add_u32 v%d, s%d, v%d' % (vT, sT0, vT))
    A('s_lshl_b32 s%d, s%d, 4' % (sT0, sWAVE))
    A('v_lshlrev_b32 v%d, 3, v%d' % (vT + 1, vLane))
    A('v_add_u32 v%d, s%d, v%d' % (vT + 1, sT0, vT + 1))
    A.nop(6)
    stamp(5)
    A.c('write o partial of this wave to LDS')
    for hd in range(2):
        for j in range(8):
            A('v_mov_b32 v%d, v%d' % (vS + 8 * hd + j, vAcc + 4 * j + hd))
    A('s_mov_b64 exec, 0xffff')
    for hd in range(2):
        A('ds_write_b128 v%d, %s offset:%d' % (vT, vr(vS + 8 * hd), L_OC + 512 * hd))
        A('ds_write_b128 v%d, %s offset:%d' % (vT, vr(vS + 8 * hd + 4), L_OC + 512 * hd + 16))
    A('s_mov_b64 exec, 3')
    A('ds_write_b64 v%d, v[%d:%d] offset:%d' % (vT + 1, vM, vL, L_ML))
    lds_inc(F_KVCNT, vZ, vT, ret=True)
    A('s_cmp_lg_u32 s%d, 3' % sT0)
    A('s_cbranch_scc1 L_end')
    A.c('last KV wave: combine the four partials and publish')
    vHd, vKk = 12, 13
    A('v_lshrrev_b32 v%d, 5, v%d' % (vHd, vLane))
    A('v_and_b32 v%d, 31, v%d' % (vKk, vLane))
    A('v_lshlrev_b32 v%d, 4, v%d' % (vT, vLane))
    A('v_lshlrev_b32 v%d, 3, v%d' % (vT + 1, vHd))
    for w in range(4):
        A('ds_read_b128 %s, v%d offset:%d' % (vr(vS + 4 * w), vT, L_OC + 1024 * w))
        A('ds_read_b64 v[%d:%d], v%d offset:%d' % (vS + 16 + 2 * w, vS + 17 + 2 * w, vT + 1, L_ML + 16 * w))
    A('s_lshl_b32 s%d, s%d, 5' % (sT1, sA))
    A('s_add_u32 s%d, s%d, s%d' % (sT1, sT1, sB))
    A('s_mul_i32 s%d, s%d, %d' % (sT1, sT1, P2_SLOT))
    A('s_add_u32 s%d, s%d, %d' % (sT1, sT1, P2_OFF))
    A('s_add_u32 s40, s%d, s%d' % (sWS, sT1))
    A('s_addc_u32 s41, s%d, 0' % (sWS + 1))
    A('s_waitcnt lgkmcnt(0)')
    m_ = [vS + 16 + 2 * w for w in range(4)]
    l_ = [vS + 17 + 2 * w for w in range(4)]
    A('v_max3_f32 v%d, v%d, v%d, v%d' % (vM, m_[0], m_[1], m_[2]))
    A('v_max_f32 v%d, v%d, v%d' % (vM, vM, m_[3]))
    for w in range(4):
        A('v_sub_f32 v%d, v%d, v%d' % (m_[w], m_[w], vM))
        A('v_mul_f32 v%d, s%d, v%d' % (m_[w], sLOG2E, m_[w]))
        A('v_exp_f32 v%d, v%d' % (m_[w], m_[w]))
    A.nop(1)
    A('v_mul_f32 v%d, v%d, v%d' % (vL, m_[0], l_[0]))
    for w in range(1, 4):
        A('v_fmac_f32 v%d, v%d, v%d' % (vL, m_[w], l_[w]))
    vO = vS + 24
    for e in range(4):
        A('v_mul_f32 v%d, v%d, v%d' % (vO + e, m_[0], vS + e))
        for w in range(1, 4):
            A('v_fmac_f32 v%d, v%d, v%d' % (vO + e, m_[w], vS + 4 * w + e))
    get_tag(vZ, vT)
    granules(vKt, [vO, vO + 1, vO + 2, vO + 3, vM, vL])
    A('v_mul_u32_u24 v%d, %d, v%d' % (vT, 16 * P2_SLOT, vHd))
    A('v_lshl_add_u32 v%d, v%d, 5, v%d' % (vT + 1, vKk, vT))
    A('global_store_dwordx4 v%d, %s, s[40:41] sc1' % (vT + 1, vr(vKt)))
    A('global_store_dwordx4 v%d, %s, s[40:41] offset:16 sc1' % (vT + 1, vr(vKt + 4)))
    A('s_mov_b32 exec_lo, 1')
    A('s_mov_b32 exec_hi, 1')
    A('global_store_dwordx4 v%d, %s, s[40:41] offset:1024 sc1' % (vT, vr(vKt + 8)))
    lds_inc(F_P2PUB, vZ, vT + 2)
    A('s_branch L_end')

    A.label('L_aux')
    A.c('---------------- aux waves')
    A('s_setprio 3')
    A('s_sub_u32 s%d, s%d, 4' % (sXW, sWAVE))
    vHalf, vCi, vT = 5, 6, 8
    vXs = 20
    vRsub, vCc, vOff, vXa = 14, 15, 16, 19
    vAc = 32
    vGr = 40
    vXv = 64
    vW = 128
    sRQ, sCQ = 50, 51
    A('v_lshrrev_b32 v%d, 5, v%d' % (vHalf, vLane))
    A('v_and_b32 v%d, 31, v%d' % (vCi, vLane))
    A('s_lshr_b32 s%d, s%d, 2' % (sRQ, sB))
    A('s_and_b32 s%d, s%d, 3' % (sCQ, sB))
    A('s_cmp_eq_u32 s%d, 3' % sXW)
    A('s_cbranch_scc1 L_x3')
    A('v_lshlrev_b32 v%d, 1, v%d' % (vT + 1, vLane))
    for k in range(9):
        A('global_load_ushort v%d, v%d, %s offset:%d' % (vXs + k, vT + 1, sp(sX), 128 * k))
    A('s_mul_i32 s%d, s%d, 144' % (sT4, sRQ))
    A('s_cmp_lg_u32 s%d, 0' % sXW)
    A('s_cbranch_scc1 L_s1_gu')
    A.c('x0: wq tile, 144 rows x 64 cols')
    A('v_lshrrev_b32 v%d, 3, v%d' % (vRsub, vLane))
    A('v_and_b32 v%d, 7, v%d' % (vCc, vLane))
    A('v_lshlrev_b32 v%d, 13, v%d' % (vOff, vRsub))
    A('v_lshl_add_u32 v%d, v%d, 4, v%d' % (vOff, vCc, vOff))
    A('s_lshl_b32 s%d, s%d, 13' % (sT1, sT4))
    A('s_lshl_b32 s%d, s%d, 9' % (sT2, sA))
    A('s_add_u32 s%d, s%d, s%d' % (sT1, sT1, sT2))
    A('s_lshl_b32 s%d, s%d, 7' % (sT2, sCQ))
    A('s_add_u32 s%d, s%d, s%d' % (sT1, sT1, sT2))
    A('s_add_u32 s40, s%d, s%d' % (sWQ, sT1))
    A('s_addc_u32 s41, s%d, 0' % (sWQ + 1))
    for t in range(18):
        A('global_load_dwordx4 %s, v%d, s[40:41]%s' % (vr(vW + 4 * t), vOff, NT))
        if t < 17:
            add64(40, 8 * 8192)
    A('s_branch L_s1_issued')
    A.label('L_s1_gu')
    A.c('x1 / x2: gate / up tile, 144 rows x 72 cols')
    A('s_mov_b32 s%d, 0x1c72' % sT1)
    A('v_mul_u32_u24 v%d, s%d, v%d' % (vRsub, sT1, vLane))
    A('v_lshrrev_b32 v%d, 16, v%d' % (vRsub, vRsub))
    A('v_mul_u32_u24 v%d, 9, v%d' % (vCc, vRsub))
    A('v_sub_u32 v%d, v%d, v%d' % (vCc, vLane, vCc))
    A('v_min_u32 v%d, 6, v%d' % (vRsub, vRsub))
    A('v_mul_u32_u24 v%d, 9216, v%d' % (vOff, vRsub))
    A('v_lshl_add_u32 v%d, v%d, 4, v%d' % (vOff, vCc, vOff))
    A('v_min_u32 v%d, 3, v%d' % (vT, vRsub))
    A('v_mul_u32_u24 v%d, 9216, v%d' % (vT, vT))
    A('v_lshl_add_u32 v%d, v%d, 4, v%d' % (vT, vCc, vT))
    A('s_mul_i32 s%d, s%d, 9216' % (sT1, sT4))
    A('s_mul_i32 s%d, s%d, 576' % (sT2, sA))
    A('s_add_u32 s%d, s%d, s%d' % (sT1, sT1, sT2))
    A('s_mul_i32 s%d, s%d, 144' % (sT2, sCQ))
    A('s_add_u32 s%d, s%d, s%d' % (sT1, sT1, sT2))
    A('s_cmp_eq_u32 s%d, 1' % sXW)
    A('s_cselect_b32 s40, s%d, s%d' % (sWG, sWU))
    A('s_cselect_b32 s41, s%d, s%d' % (sWG + 1, sWU + 1))
    A('s_add_u32 s40, s40, s%d' % sT1)
    A('s_addc_u32 s41, s41, 0')
    for t in range(21):
        A('global_load_dwordx4 %s, v%d, s[40:41]%s' % (vr(vW + 4 * t), vOff if t < 20 else vT, NT))
        if t < 20:
            add64(40, 7 * 9216)
    A.label('L_s1_issued')
    lds_inc(F_S1ISS, vZ, vT)
    stamp(1)
    A.c('layernorm (each wave redundantly; identical values written to LDS)')
    A('s_waitcnt vmcnt(18)')
    vSum, vMean, vRs, vSd, vD = 29, 30, 17, 18, 52
    for k in range(9):
        A('v_lshlrev_b32 v%d, 16, v%d' % (vXs + k, vXs + k))
    A('v_add_f32 v%d, v%d, v%d' % (vSum, vXs, vXs + 1))
    for k in range(2, 9):
        A('v_add_f32 v%d, v%d, v%d' % (vSum, vSum, vXs + k))
    allreduce('add', vSum, vT)
    A('v_mul_f32 v%d, 0x3ae38e39, v%d' % (vMean, vSum))
    for k in range(9):
        A('v_sub_f32 v%d, v%d, v%d' % (vD + k, vXs + k, vMean))
    A('v_mul_f32 v%d, v%d, v%d' % (vSum, vD, vD))
    for k in range(1, 9):
        A('v_fmac_f32 v%d, v%d, v%d' % (vSum, vD + k, vD + k))
    allreduce('add', vSum, vT)
    A('v_mul_f32 v%d, 0x3ae38e39, v%d' % (vSum, vSum))
    rne(vSum)
    A('v_add_f32 v%d, 0x3727c5ac, v%d' % (vSum, vSum))
    rne(vSum)
    A('v_sqrt_f32 v%d, v%d' % (vSd, vSum))
    A.nop(1)
    rne(vSd)
    A('v_rcp_f32 v%d, v%d' % (vRs, vSd))
    rne(vMean)
    A('v_lshlrev_b32 v%d, 2, v%d' % (vT + 2, vLane))
    for k in range(9):
        r = vXs + k
        A('v_sub_f32 v%d, v%d, v%d' % (r, r, vMean))
        rne(r)
        A('v_mul_f32 v%d, v%d, v%d' % (vT, r, vRs))
        A('v_fma_f32 v%d, -v%d, v%d, v%d' % (vT + 1, vT, vSd, r))
        A('v_fma_f32 v%d, v%d, v%d, v%d' % (r, vT + 1, vRs, vT))
        rne(r)
        A('ds_write_b32 v%d, v%d offset:%d' % (vT + 2, r, L_XF + 256 * k))
    A('v_add_u32 v%d, s%d, v%d' % (vXa, sT4, vRsub))
    A('v_lshlrev_b32 v%d, 2, v%d' % (vXa, vXa))
    for e in range(8):
        A('v_mov_b32 v%d, 0' % (vAc + e))
    A('s_lshl_b32 s%d, s%d, 2' % (sT1, sA))
    A('s_add_u32 s%d, s%d, s%d' % (sT1, sT1, sRQ))
    A('s_lshl_b32 s%d, s%d, 13' % (sT1, sT1))
    A('s_add_u32 s%d, s%d, %d' % (sT1, sT1, P1_OFF))
    A('s_add_u32 s42, s%d, s%d' % (sWS, sT1))
    A('s_addc_u32 s43, s%d, 0' % (sWS + 1))
    A('s_waitcnt lgkmcnt(0)')
    stamp(2)
    A('s_cmp_lg_u32 s%d, 0' % sXW)
    A('s_cbranch_scc1 L_c_gu')

    def mac_steps(n, xstep):
        for t in range(n):
            A('ds_read_b32 v%d, v%d offset:%d' % (vXv + t, vXa, L_XF + xstep * t))
            if t == 11:
                A('s_waitcnt lgkmcnt(0)')
        A('s_waitcnt lgkmcnt(0)')
        if n == 21:
            A('v_cmp_lt_u32 vcc, 3, v%d' % vRsub)
            A.nop(2)
            A('v_cndmask_b32 v%d, v%d, v%d, vcc' % (vXv + 20, vXv + 20, vZ))
        for t in range(n):
            A('s_waitcnt vmcnt(%d)' % (n - 1 - t))
            for r in range(4):
                A('v_lshlrev_b32 v%d, 16, v%d' % (vT, vW + 4 * t + r))
                A('v_and_b32 v%d, s%d, v%d' % (vT + 1, sMASKHI, vW + 4 * t + r))
                A('v_fmac_f32 v%d, v%d, v%d' % (vAc + 2 * r, vXv + t, vT))
                A('v_fmac_f32 v%d, v%d, v%d' % (vAc + 2 * r + 1, vXv + t, vT + 1))

    A.c('x0: q partial')
    mac_steps(18, 32)
    for e in range(8):
        A.nop(2)
        A('v_add_f32_dpp v%d, v%d, v%d row_ror:8 row_mask:0xf bank_mask:0xf' % (vAc + e, vAc + e, vAc + e))
    for e in range(8):
        xrow('add', vAc + e, vT)
    get_tag(vZ, vT)
    granules(vGr, [vAc + e for e in range(8)])
    A('s_lshl_b32 s%d, s%d, 9' % (sT1, sCQ))
    A('v_lshlrev_b32 v%d, 6, v%d' % (vT, vCc))
    A('v_add_u32 v%d, s%d, v%d' % (vT, sT1, vT))
    A('s_mov_b64 exec, 0xff')
    for k in range(4):
        A('global_store_dwordx4 v%d, %s, s[42:43] offset:%d sc1' % (vT, vr(vGr + 4 * k), 16 * k))
    A('s_mov_b64 exec, -1')
    stamp(3)
    A.c('x0: gather q')
    A('s_lshl_b32 s%d, s%d, 15' % (sT1, sA))
    A('s_add_u32 s%d, s%d, %d' % (sT1, sT1, P1_OFF))
    A('s_add_u32 s40, s%d, s%d' % (sWS, sT1))
    A('s_addc_u32 s41, s%d, 0' % (sWS + 1))
    A('v_lshlrev_b32 v%d, 5, v%d' % (vOff, vLane))
    for r in range(1, 4):
        A('v_add_u32 v%d, %d, v%d' % (vXv + r, P1_SLOT * r, vOff))
    A('v_mov_b32 v%d, v%d' % (vXv, vOff))
    A('v_lshrrev_b32 v%d, 2, v%d' % (vT + 2, vC))
    A('v_lshlrev_b32 v%d, 13, v%d' % (vT + 2, vT + 2))
    A('v_and_b32 v%d, 3, v%d' % (vT + 3, vC))
    A('v_lshl_add_u32 v%d, v%d, 9, v%d' % (vT + 2, vT + 3, vT + 2))
    if PRE_SLEEP:
        A('s_sleep %d' % PRE_SLEEP)
    light_poll(vT + 2, 40, 0, 16, vW, POLL_SLEEP)
    A('s_mov_b32 s%d, %d' % (sSPIN, SPIN))
    A.label('L_qpoll')
    for r in range(4):
        A('global_load_dwordx4 %s, v%d, s[40:41] sc1' % (vr(vW + 8 * r), vXv + r))
        A('global_load_dwordx4 %s, v%d, s[40:41] offset:16 sc1' % (vr(vW + 8 * r + 4), vXv + r))
    A('s_waitcnt vmcnt(0)')
    bad_tags(range(vW + 1, vW + 32, 2), vT)
    A('s_cbranch_vccz L_qpoll_done')
    spin_back('L_qpoll', 2)
    A.label('L_qpoll_done')
    for r in range(1, 4):
        for e in range(4):
            A('v_add_f32 v%d, v%d, v%d' % (vW + 2 * e, vW + 2 * e, vW + 8 * r + 2 * e))
    A('v_cvt_pk_bf16_f32 v%d, v%d, v%d' % (vW, vW, vW + 2))
    A('v_cvt_pk_bf16_f32 v%d, v%d, v%d' % (vW + 1, vW + 4, vW + 6))
    A('v_lshlrev_b32 v%d, 3, v%d' % (vT, vLane))
    A('ds_write_b64 v%d, v[%d:%d] offset:%d' % (vT, vW, vW + 1, L_Q))
    lds_inc(F_QRDY, vZ, vT)
    stamp(4)
    A('s_cmp_lg_u32 s%d, 0' % sB)
    A('s_cbranch_scc1 L_end')
    A.c('x0 of workgroups with b==0: final reduction for 36 output columns')
    A('s_lshr_b32 s%d, s%d, 1' % (sT0, sA))
    A('s_and_b32 s%d, s%d, 1' % (sT1, sA))
    A('s_mul_i32 s%d, s%d, %d' % (sT2, sT0, 32 * P3_SLOT))
    A('s_mul_i32 s%d, s%d, 288' % (sT3, sT1))
    A('s_add_u32 s%d, s%d, s%d' % (sT2, sT2, sT3))
    A('s_add_u32 s%d, s%d, %d' % (sT2, sT2, P3_OFF))
    A('s_add_u32 s40, s%d, s%d' % (sWS, sT2))
    A('s_addc_u32 s41, s%d, 0' % (sWS + 1))
    vC8 = 9
    vOf = 96
    A('v_min_u32 v%d, 8, v%d' % (vC8, vC))
    A('v_mul_u32_u24 v%d, %d, v%d' % (vOf, P3_SLOT, vG))
    A('v_lshl_add_u32 v%d, v%d, 5, v%d' % (vOf, vC8, vOf))
    for i in range(1, 8):
        A('v_add_u32 v%d, %d, v%d' % (vOf + i, 4 * P3_SLOT * i, vOf))
    A('s_mul_i32 s%d, s%d, 72' % (sT4, sA))
    A('v_lshlrev_b32 v%d, 3, v%d' % (vOf + 8, vC8))
    A('v_add_u32 v%d, s%d, v%d' % (vOf + 8, sT4, vOf + 8))
    A('global_load_dwordx2 v[%d:%d], v%d, %s' % (vOf + 10, vOf + 11, vOf + 8, sp(sX)))
    vBs = 32
    for part in (1, 0):
        lp = 'L_fpoll%d' % part
        lds_wait(F_BPUB if part else F_APUB, None, vZ, vT)
        if P3_LIGHT or part:
            A('v_mul_u32_u24 v%d, %d, v%d' % (vT + 2, P3_SLOT, vCi))
            light_poll(vT + 2, 40, 576 * part, 32, vW, P3B_SLEEP if part else P3_LIGHT)
        A('s_mov_b32 s%d, %d' % (sSPIN, SPIN))
        A.label(lp)
        for i in range(8):
            A('global_load_dwordx4 %s, v%d, s[40:41] offset:%d sc1' % (vr(vW + 8 * i), vOf + i, 576 * part))
            A('global_load_dwordx4 %s, v%d, s[40:41] offset:%d sc1' % (vr(vW + 8 * i + 4), vOf + i, 576 * part + 16))
        A('s_waitcnt vmcnt(0)')
        bad_tags(range(vW + 1, vW + 64, 2), vT)
        A('s_cbranch_vccz %s_d' % lp)
        spin_back(lp, P3B_SLEEP if part else P3_SLEEP)
        A.label(lp + '_d')
        stamp(6 + (1 - part))
        for e in range(4):
            A('v_add_f32 v%d, v%d, v%d' % (vBs + 4 * part + e, vW + 2 * e, vW + 8 + 2 * e))
            for i in range(2, 8):
                A('v_add_f32 v%d, v%d, v%d' % (vBs + 4 * part + e, vBs + 4 * part + e, vW + 8 * i + 2 * e))
        for e in range(4):
            xrow('add', vBs + 4 * part + e, vT)
    for e in range(0, 8, 2):
        rne2(vBs + e, vBs + e + 1, vT)
    A('v_lshlrev_b32 v%d, 16, v%d' % (vW + 8, vOf + 10))
    A('v_and_b32 v%d, s%d, v%d' % (vW + 9, sMASKHI, vOf + 10))
    A('v_lshlrev_b32 v%d, 16, v%d' % (vW + 10, vOf + 11))
    A('v_and_b32 v%d, s%d, v%d' % (vW + 11, sMASKHI, vOf + 11))
    for e in range(4):
        A('v_add_f32 v%d, v%d, v%d' % (vBs + e, vBs + e, vW + 8 + e))
    rne2(vBs, vBs + 1, vT)
    rne2(vBs + 2, vBs + 3, vT)
    for e in range(4):
        A('v_add_f32 v%d, v%d, v%d' % (vBs + e, vBs + e, vBs + 4 + e))
    A('v_cvt_pk_bf16_f32 v%d, v%d, v%d' % (vW + 8, vBs, vBs + 1))
    A('v_cvt_pk_bf16_f32 v%d, v%d, v%d' % (vW + 9, vBs + 2, vBs + 3))
    A('s_mov_b64 exec, 0x1ff')
    A('global_store_dwordx2 v%d, v[%d:%d], %s' % (vOf + 8, vW + 8, vW + 9, sp(sOUT)))
    A('s_cmp_lg_u32 s%d, 0' % sA)
    A('s_cbranch_scc1 L_noepoch')
    A.c('every workgroup has consumed the epoch word by now: advance it')
    A('s_mov_b64 exec, 1')
    A('v_mov_b32 v%d, s%d' % (vT, sTAG))
    A('global_store_dword v%d, v%d, %s offset:%d sc1' % (vZ, vT, sp(sWS), EP_OFF))
    A.label('L_noepoch')
    if STAMPS:
        stamp(8)
        A('s_mov_b64 exec, 1')
        A('s_sub_u32 s%d, s72, s64' % sT0)
        A('s_lshl_b32 s%d, s%d, 2' % (sT1, sA))
        A('v_mov_b32 v%d, s%d' % (vT, sT0))
        A('v_mov_b32 v%d, s%d' % (vT + 1, sT1))
        A('global_store_dword v%d, v%d, %s' % (vT + 1, vT, sp(sDBG)))
    A('s_branch L_end')

    A.label('L_c_gu')
    mac_steps(21, 28)
    A('s_sub_u32 s%d, s%d, 1' % (sT1, sXW))
    A('s_lshl_b32 s%d, s%d, 11' % (sT1, sT1))
    A('v_lshlrev_b32 v%d, 5, v%d' % (vT, vLane))
    A('v_add_u32 v%d, s%d, v%d' % (vT, sT1, vT))
    A('ds_write_b128 v%d, %s offset:%d' % (vT, vr(vAc), L_FR))
    A('ds_write_b128 v%d, %s offset:%d' % (vT, vr(vAc + 4), L_FR + 16))
    A('v_min_u32 v%d, 8, v%d' % (vCc, vLane))
    A('v_lshlrev_b32 v%d, 5, v%d' % (vT, vCc))
    A('v_add_u32 v%d, s%d, v%d' % (vT, sT1, vT))
    A('s_waitcnt lgkmcnt(0)')
    for rs in range(7):
        A('ds_read_b128 %s, v%d offset:%d' % (vr(vW + 8 * rs), vT, L_FR + 288 * rs))
        A('ds_read_b128 %s, v%d offset:%d' % (vr(vW + 8 * rs + 4), vT, L_FR + 288 * rs + 16))
    A('s_waitcnt lgkmcnt(0)')
    for rs in range(1, 7):
        for e in range(8):
            A('v_add_f32 v%d, v%d, v%d' % (vW + e, vW + e, vW + 8 * rs + e))
    get_tag(vZ, vT)
    granules(vGr, [vW + e for e in range(8)])
    A('s_mul_i32 s%d, s%d, 2304' % (sT1, sXW))
    A('s_mul_i32 s%d, s%d, 576' % (sT2, sCQ))
    A('s_add_u32 s%d, s%d, s%d' % (sT1, sT1, sT2))
    A('s_sub_u32 s%d, s%d, 256' % (sT1, sT1))
    A('v_lshlrev_b32 v%d, 6, v%d' % (vT, vCc))
    A('v_add_u32 v%d, s%d, v%d' % (vT, sT1, vT))
    A('s_mov_b64 exec, 0x1ff')
    for k in range(4):
        A('global_store_dwordx4 v%d, %s, s[42:43] offset:%d sc1' % (vT, vr(vGr + 4 * k), 16 * k))
    A('s_mov_b64 exec, -1')
    stamp(3)
    A('s_cmp_eq_u32 s%d, 2' % sXW)
    A('s_cbranch_scc1 L_x2')
    A.c('x1: gather gate/up, compute h')
    A('s_lshl_b32 s%d, s%d, 15' % (sT1, sA))
    A('s_add_u32 s%d, s%d, %d' % (sT1, sT1, P1_OFF))
    A('s_add_u32 s40, s%d, s%d' % (sWS, sT1))
    A('s_addc_u32 s41, s%d, 0' % (sWS + 1))
    A('v_min_u32 v%d, 35, v%d' % (vCc, vLane))
    A('s_mul_i32 s%d, s%d, 1152' % (sT1, sHH))
    A('s_add_u32 s%d, s%d, 2048' % (sT1, sT1))
    A('v_lshlrev_b32 v%d, 5, v%d' % (vOff, vCc))
    A('v_add_u32 v%d, s%d, v%d' % (vXv, sT1, vOff))
    for r in range(1, 4):
        A('v_add_u32 v%d, %d, v%d' % (vXv + r, P1_SLOT * r, vXv))
    A('v_lshrrev_b32 v%d, 2, v%d' % (vT + 2, vC))
    A('v_lshlrev_b32 v%d, 13, v%d' % (vT + 2, vT + 2))
    A('v_and_b32 v%d, 1, v%d' % (vT + 3, vC))
    A('v_mul_u32_u24 v%d, 576, v%d' % (vT + 3, vT + 3))
    A('v_add_u32 v%d, v%d, v%d' % (vT + 2, vT + 2, vT + 3))
    A('v_bfe_u32 v%d, v%d, 1, 1' % (vT + 3, vC))
    A('v_mul_u32_u24 v%d, 2304, v%d' % (vT + 3, vT + 3))
    A('v_add_u32 v%d, v%d, v%d' % (vT + 2, vT + 2, vT + 3))
    A('v_add_u32 v%d, s%d, v%d' % (vT + 2, sT1, vT + 2))
    if PRE_SLEEP_H:
        A('s_sleep %d' % PRE_SLEEP_H)
    light_poll(vT + 2, 40, 0, 16, vW, 2 * POLL_SLEEP)
    A('s_mov_b32 s%d, %d' % (sSPIN, SPIN))
    A.label('L_hpoll')
    for r in range(4):
        for mt in range(2):
            A('global_load_dwordx4 %s, v%d, s[40:41] offset:%d sc1' % (vr(vW + 16 * r + 8 * mt), vXv + r, 2304 * mt))
            A('global_load_dwordx4 %s, v%d, s[40:41] offset:%d sc1' % (vr(vW + 16 * r + 8 * mt + 4), vXv + r, 2304 * mt + 16))
    A('s_waitcnt vmcnt(0)')
    bad_tags(range(vW + 1, vW + 64, 2), vT)
    A('s_cbranch_vccz L_hpoll_done')
    spin_back('L_hpoll', 8)
    A.label('L_hpoll_done')
    for e in range(8):
        A('v_add_f32 v%d, v%d, v%d' % (vAc + e, vW + 2 * e, vW + 16 + 2 * e))
        for r in range(2, 4):
            A('v_add_f32 v%d, v%d, v%d' % (vAc + e, vAc + e, vW + 16 * r + 2 * e))
    for e in range(0, 8, 2):
        rne2(vAc + e, vAc + e + 1, vT + 1)
    for e in range(4):
        g = vAc + e
        A('v_mul_f32 v%d, s%d, v%d' % (vW + e, sLOG2E, g))
        A('v_exp_f32 v%d, -v%d' % (vW + e, vW + e))
        A.nop(1)
        A('v_add_f32 v%d, 1.0, v%d' % (vW + e, vW + e))
        A('v_rcp_f32 v%d, v%d' % (vW + e, vW + e))
        A.nop(1)
        A('v_mul_f32 v%d, v%d, v%d' % (g, g, vW + e))
    rne2(vAc, vAc + 1, vT + 1)
    rne2(vAc + 2, vAc + 3, vT + 1)
    for e in range(4):
        A('v_mul_f32 v%d, v%d, v%d' % (vAc + e, vAc + e, vAc + 4 + e))
    A('v_cvt_pk_bf16_f32 v%d, v%d, v%d' % (vW + 8, vAc, vAc + 1))
    A('v_cvt_pk_bf16_f32 v%d, v%d, v%d' % (vW + 9, vAc + 2, vAc + 3))
    A('v_lshlrev_b32 v%d, 3, v%d' % (vT, vCc))
    A('ds_write_b64 v%d, v[%d:%d] offset:%d' % (vT, vW + 8, vW + 9, L_H))
    lds_inc(F_HRDY, vZ, vT)
    stamp(4)
    A('s_branch L_end')

    def p3_slot():
        A('s_lshl_b32 s%d, s%d, 5' % (sT1, sCB))
        A('s_lshl_b32 s%d, s%d, 1' % (sT2, sA))
        A('s_add_u32 s%d, s%d, s%d' % (sT1, sT1, sT2))
        A('s_add_u32 s%d, s%d, s%d' % (sT1, sT1, sHH))
        A('s_mul_i32 s%d, s%d, %d' % (sT1, sT1, P3_SLOT))
        A('s_add_u32 s%d, s%d, %d' % (sT1, sT1, P3_OFF))
        A('s_add_u32 s48, s%d, s%d' % (sWS, sT1))
        A('s_addc_u32 s49, s%d, 0' % (sWS + 1))

    A.label('L_x2')
    A.c('x2: wo tile (128 rows x 72 cols)')
    lds_wait(F_VISS, 4, vZ, vT, sleep=2)
    stamp(4)
    vO1, vO2 = 12, 13
    vR = 128
    vTB = 96
    vAcc = 32
    A('v_min_u32 v%d, 8, v%d' % (vC8, vC))
    A('v_mul_u32_u24 v%d, %d, v%d' % (vO1, 8 * 1152, vG))
    A('v_lshl_add_u32 v%d, v%d, 4, v%d' % (vO1, vC8, vO1))
    A('v_add_u32 v%d, %d, v%d' % (vO2, 4 * 1152, vO1))
    A('s_lshl_b32 s%d, s%d, 1' % (sT0, sA))
    A('s_add_u32 s%d, s%d, s%d' % (sT0, sT0, sHH))
    A('s_mul_i32 s%d, s%d, %d' % (sT1, sT0, 128 * 1152))
    A('s_mul_i32 s%d, s%d, 144' % (sT2, sCB))
    A('s_add_u32 s%d, s%d, s%d' % (sT1, sT1, sT2))
    A('s_add_u32 s40, s%d, s%d' % (sWO, sT1))
    A('s_addc_u32 s41, s%d, 0' % (sWO + 1))
    for blk in range(4):
        for i in range(8):
            A('global_load_dwordx4 %s, v%d, s[40:41] offset:%d%s' % (vr(vR + 32 * blk + 4 * i), vO1 if i < 4 else vO2, (i & 3) * 1152, NTW))
        if blk < 3:
            add64(40, 32 * 1152)
    A('s_mul_i32 s%d, s%d, %d' % (sT1, sT0, 16 * P2_SLOT))
    A('s_add_u32 s%d, s%d, %d' % (sT1, sT1, P2_OFF))
    A('s_add_u32 s42, s%d, s%d' % (sWS, sT1))
    A('s_addc_u32 s43, s%d, 0' % (sWS + 1))
    p3_slot()
    vGo = 14
    vMo = 20
    A('v_lshlrev_b32 v%d, 4, v%d' % (vGo, vLane))
    for k in range(1, 6):
        A('v_add_u32 v%d, %d, v%d' % (vGo + k, 3 * P2_SLOT * k, vGo))
    A('v_mul_u32_u24 v%d, %d, v%d' % (vMo, P2_SLOT, vC))
    tb = [vTB, vR, vR + 32, vR + 64]
    for blk in range(4):
        A('s_waitcnt vmcnt(%d)' % (24 - 8 * blk))
        transpose8(vR + 32 * blk, tb[blk])
    stamp(5)
    vOo = 32
    vMl = 224
    lds_wait(F_P2PUB, None, vZ, vT)

    def full_gather():
        A('global_load_dwordx4 %s, v%d, s[42:43] offset:1024 sc1' % (vr(vMl), vMo))
        for i in range(16):
            A('global_load_dwordx4 %s, v%d, s[42:43] offset:%d sc1' % (vr(vOo + 4 * i), vGo + i // 3, (i % 3) * P2_SLOT))
        A('s_waitcnt vmcnt(0)')
        bad_tags(list(range(vOo + 1, vOo + 64, 2)) + [vMl + 1, vMl + 3], vT)
        A('s_cbranch_vccz L_opoll_done')
    if P2_SPEC:
        full_gather()
    if P2_LIGHT:
        light_poll(vMo, 42, 1024, 16, vMl, P2_LIGHT)
    A('s_mov_b32 s%d, %d' % (sSPIN, SPIN))
    A.label('L_opoll')
    full_gather()
    spin_back('L_opoll', P2_SLEEP)
    A.label('L_opoll_done')
    stamp(6)
    vM, vL = 10, 11
    A('v_mov_b32 v%d, v%d' % (vM, vMl))
    for d in ['quad_perm:[1,0,3,2]', 'quad_perm:[2,3,0,1]', 'row_half_mirror', 'row_mirror']:
        A.nop(2)
        A('v_max_f32_dpp v%d, v%d, v%d %s row_mask:0xf bank_mask:0xf' % (vM, vM, vM, d))
    A('v_sub_f32 v%d, v%d, v%d' % (vMl, vMl, vM))
    A('v_mul_f32 v%d, s%d, v%d' % (vMl, sLOG2E, vMl))
    A('v_exp_f32 v%d, v%d' % (vMl, vMl))
    A.nop(1)
    A('v_mul_f32 v%d, v%d, v%d' % (vL, vMl, vMl + 2))
    for d in ['quad_perm:[1,0,3,2]', 'quad_perm:[2,3,0,1]', 'row_half_mirror', 'row_mirror']:
        A.nop(2)
        A('v_add_f32_dpp v%d, v%d, v%d %s row_mask:0xf bank_mask:0xf' % (vL, vL, vL, d))
    A('v_rcp_f32 v%d, v%d' % (vL, vL))
    A.nop(1)
    A('v_mul_f32 v%d, v%d, v%d' % (vMl, vMl, vL))
    A.nop(1)
    for i in range(16):
        A('v_readlane_b32 s%d, v%d, %d' % (80 + i, vMl, i))
    A.nop(2)
    vO = 228
    A('v_mul_f32 v%d, s80, v%d' % (vO, vOo))
    A('v_mul_f32 v%d, s80, v%d' % (vO + 1, vOo + 2))
    for i in range(1, 16):
        A('v_fmac_f32 v%d, s%d, v%d' % (vO, 80 + i, vOo + 4 * i))
        A('v_fmac_f32 v%d, s%d, v%d' % (vO + 1, 80 + i, vOo + 4 * i + 2))
    A('v_cvt_pk_bf16_f32 v%d, v%d, v%d' % (vO, vO, vO + 1))
    A('v_lshlrev_b32 v%d, 2, v%d' % (vT, vLane))
    A('ds_write_b32 v%d, v%d offset:%d' % (vT, vO, L_OB))
    A('v_lshlrev_b32 v%d, 4, v%d' % (vT, vG))
    A('s_waitcnt lgkmcnt(0)')
    vAo = 64
    for blk in range(4):
        A('ds_read_b128 %s, v%d offset:%d' % (vr(vAo + 4 * blk), vT, L_OB + 64 * blk))
    A('s_waitcnt lgkmcnt(0)')
    for blk in range(4):
        for j in range(8):
            A('v_mfma_f32_16x16x32_bf16 %s, %s, %s, %s' % (vr(vAcc + 4 * j), vr(vAo + 4 * blk), vr(tb[blk] + 4 * j),
                                                            '0' if blk == 0 else vr(vAcc + 4 * j)))
    A('v_lshlrev_b32 v%d, 6, v%d' % (vT, vC))
    A.nop(9)
    granules(232, [vAcc + 4 * j for j in range(8)])
    A('s_mov_b64 exec, 0x1ff')
    for k in range(4):
        A('global_store_dwordx4 v%d, %s, s[48:49] offset:%d sc1' % (vT, vr(232 + 4 * k), 16 * k))
    lds_inc(F_APUB, vZ, vT + 2)
    A('s_branch L_end')

    A.label('L_x3')
    A.c('x3: read the epoch word, then the w_down tile (144 rows x 72 cols)')
    A('global_load_dword v%d, v%d, %s offset:%d%s' % (vT + 1, vZ, sp(sWS), EP_OFF, EPLD))
    A('s_waitcnt vmcnt(0)')
    A('v_add_u32 v%d, 1, v%d' % (vT + 1, vT + 1))
    A('ds_write_b32 v%d, v%d offset:%d' % (vZ, vT + 1, L_FL + F_TAG))
    A('v_readfirstlane_b32 s%d, v%d' % (sTAG, vT + 1))
    lds_inc(F_TAGRDY, vZ, vT)
    stamp(1)
    vR = 96
    vTB = 64
    vAcc = 32
    vO3, vO4 = 14, 15
    A('v_min_u32 v%d, 8, v%d' % (vC8, vC))
    A('v_mul_u32_u24 v%d, %d, v%d' % (vO1, 8 * 1152, vG))
    A('v_lshl_add_u32 v%d, v%d, 4, v%d' % (vO1, vC8, vO1))
    A('v_add_u32 v%d, %d, v%d' % (vO2, 4 * 1152, vO1))
    A('v_and_b32 v%d, 1, v%d' % (vO3, vG))
    A('v_mul_u32_u24 v%d, %d, v%d' % (vO3, 8 * 1152, vO3))
    A('v_lshl_add_u32 v%d, v%d, 4, v%d' % (vO3, vC8, vO3))
    A('v_add_u32 v%d, %d, v%d' % (vO4, 4 * 1152, vO3))
    A('s_lshl_b32 s%d, s%d, 1' % (sT3, sA))
    A('s_add_u32 s%d, s%d, s%d' % (sT3, sT3, sHH))
    A('s_mul_i32 s%d, s%d, %d' % (sT1, sT3, 144 * 1152))
    A('s_mul_i32 s%d, s%d, 144' % (sT2, sCB))
    A('s_add_u32 s%d, s%d, s%d' % (sT1, sT1, sT2))
    A('s_add_u32 s40, s%d, s%d' % (sWD, sT1))
    A('s_addc_u32 s41, s%d, 0' % (sWD + 1))
    p3_slot()
    lds_wait(WD_GATE[0], WD_GATE[1], vZ, vT, sleep=2)
    stamp(3)
    for blk in range(5):
        o1, o2 = (vO1, vO2) if blk < 4 else (vO3, vO4)
        for i in range(8):
            if blk * 8 + i >= WD_INFL:
                A('s_waitcnt vmcnt(%d)' % (WD_INFL - 1))
            A('global_load_dwordx4 %s, v%d, s[40:41] offset:%d%s' % (vr(vR + 32 * blk + 4 * i), o1 if i < 4 else o2, (i & 3) * 1152, NTW))
        if blk < 4:
            add64(40, 32 * 1152)
    lds_wait(F_HRDY, None, vZ, vT)
    stamp(4)
    A('v_lshlrev_b32 v%d, 4, v%d' % (vT, vG))
    ah = [16, 20, 24, 28, 0]
    A('v_lshlrev_b32 v%d, 6, v%d' % (vO2, vC))
    for blk in range(5):
        A('ds_read_b128 %s, v%d offset:%d' % (vr(ah[blk]), vT, L_H + 64 * blk))
    A('s_waitcnt lgkmcnt(0)')
    for blk in range(5):
        A('s_waitcnt vmcnt(%d)' % (32 - 8 * blk))
        transpose8(vR + 32 * blk, vTB)
        A.nop(2)
        for j in range(8):
            A('v_mfma_f32_16x16x32_bf16 %s, %s, %s, %s' % (vr(vAcc + 4 * j), vr(ah[blk]), vr(vTB + 4 * j),
                                                            '0' if blk == 0 else vr(vAcc + 4 * j)))
    A.nop(10)
    granules(vTB, [vAcc + 4 * j for j in range(8)])
    A('s_mov_b64 exec, 0x1ff')
    for k in range(4):
        A('global_store_dwordx4 v%d, %s, s[48:49] offset:%d sc1' % (vO2, vr(vTB + 4 * k), 576 + 16 * k))
    lds_inc(F_BPUB, vZ, vT + 2)
    stamp(5)

    A.label('L_end')
    if STAMPS:
        A('s_cmp_ge_u32 s2, 256')
        A('s_cbranch_scc1 L_end2')
        stamp(15)
        A('s_mov_b64 exec, 1')
        A('s_lshl_b32 s60, s2, 3')
        A('s_add_u32 s60, s60, s%d' % sWAVE)
        A('s_lshl_b32 s60, s60, 6')
        A('s_add_u32 s60, s60, %d' % ST_OFF)
        A('s_add_u32 s60, s%d, s60' % sWS)
        A('s_addc_u32 s61, s%d, 0' % (sWS + 1))
        A('v_mov_b32 v8, 0')
        for i in range(16):
            A('v_mov_b32 v9, s%d' % (64 + i))
            A('global_store_dword v8, v9, s[60:61] offset:%d' % (4 * i))
        A.label('L_end2')
    A('s_endpgm')
    A.l.append('.section .rodata,"a"')
    A.l.append('.p2align 6')
    A.l.append('.amdhsa_kernel %s_kernel' % NAME)
    A.l.append('  .amdhsa_next_free_vgpr 256')
    A.l.append('  .amdhsa_next_free_sgpr 96')
    A.l.append('  .amdhsa_accum_offset 256')
    A.l.append('  .amdhsa_group_segment_fixed_size 0')
    A.l.append('  .amdhsa_kernarg_size 96')
    A.l.append('  .amdhsa_user_sgpr_count 2')
    A.l.append('  .amdhsa_user_sgpr_kernarg_segment_ptr 1')
    A.l.append('  .amdhsa_system_sgpr_workgroup_id_x 1')
    A.l.append('.end_amdhsa_kernel')


gen()
out = sys.argv[1] if len(sys.argv) > 1 else 'cdna_kernels/%s.s' % NAME
def fix(l):
    if l.endswith(' sc1'):
        if 'global_load' in l:
            return l[:-3] + LD1
        if 'global_store' in l:
            return l[:-3] + ST1
    return l
A.l = [fix(l) for l in A.l]
open(out, 'w').write('\n'.join(A.l) + '\n')
print('wrote', out, len(A.l), 'lines')
```
